```python
import torch

def _softmax(x, axis=-1):
    return torch.softmax(x, dim=axis)
def _gelu(x):
    return torch.nn.functional.gelu(x, approximate="tanh")
def _silu(x):
    return torch.nn.functional.silu(x)
def _sigmoid(x):
    return torch.sigmoid(x)
def _layernorm(x, axis=-1, eps=1e-5):
    m = x.mean(dim=axis, keepdim=True)
    v = x.var(dim=axis, keepdim=True, unbiased=False)
    return (x - m) / torch.sqrt(v + eps)
def _scatter_add(tgt, idx, src, axis=0):
    return tgt.clone().index_add_(axis, idx, src)
def _segment_sum(src, seg, n):
    out = torch.zeros((n,) + src.shape[1:], dtype=src.dtype)
    return out.index_add_(0, seg, src)
def _pad(x, pw):
    flat = tuple(v for pair in reversed(pw) for v in pair)
    return torch.nn.functional.pad(x, flat)

kernel_name = 'gated_mix__linear_attn_block__dense_activation_silu__prompt'

def setup_inputs():

    _w = (lambda a: (lambda t: t.to(torch.bfloat16) if t.is_floating_point() else t)(torch.as_tensor(a)))
    def _A_setup():
        B, S, D = 1, 2048, 512
        return {
            "x": _w((lambda *s: torch.randn(*s, dtype=torch.bfloat16) * 0.1)(B, S, D)),
            "wqkv": _w((lambda *s: torch.randn(*s, dtype=torch.bfloat16) * 0.8)(D, 3 * D)),
            "wo": _w((lambda *s: torch.randn(*s, dtype=torch.bfloat16) * 0.4)(D, D)),
        }
    _A_in = _A_setup()

    def _B_setup():
        B, S, D, F = 1, 2048, 512, 1376
        return {
            "x": _w((lambda *s: torch.randn(*s, dtype=torch.bfloat16) * 0.1)(B, S, D)),
            "w1": _w((lambda *s: torch.randn(*s, dtype=torch.bfloat16) * 3.2)(D, F) * (D ** -0.5)),
            "w2": _w((lambda *s: torch.randn(*s, dtype=torch.bfloat16) * 3.2)(F, D) * (F ** -0.5)),
        }
    _B_in = _B_setup()

    return {
        "A_x": _A_in["x"],
        "A_wqkv": _A_in["wqkv"],
        "A_wo": _A_in["wo"],
        "B_x": _B_in["x"],
        "B_w1": _B_in["w1"],
        "B_w2": _B_in["w2"],
        "gate_w": _w((lambda *s: torch.randn(*s, dtype=torch.bfloat16) * 0.1)(512) * 16.0),
    }

def reference(A_x, A_wqkv, A_wo, B_x, B_w1, B_w2, gate_w):
    def _A_ref(x, wqkv, wo):
        B, S, D = x.shape
        H = 32; Dh = D // H
        qkv = (lambda x, *d: x.permute(*d))((x @ wqkv).reshape(B, S, 3, H, Dh), 2, 0, 3, 1, 4)
        q, k, v = qkv[0], qkv[1], qkv[2]
        phi = lambda t: torch.where(t > 0, t + 1, torch.exp(t)) + 1e-6
        pq, pk = phi(q), phi(k)
        kv = torch.einsum("bhsd,bhse->bhde", pk, v)
        z = torch.einsum("bhsd->bhd", pk)
        num = torch.einsum("bhqd,bhde->bhqe", pq, kv)
        den = torch.einsum("bhqd,bhd->bhq", pq, z)[..., None] + 1e-6
        o = num / den
        return (lambda x, *d: x.permute(*d))(o, 0, 2, 1, 3).reshape(B, S, D) @ wo

    def _B_ref(x, w1, w2):
        h = torch.einsum("bsd,df->bsf", x, w1)
        h = _silu(h)
        out = torch.einsum("bsf,fd->bsd", h, w2)
        return out

    x = A_x
    g = _sigmoid((x * gate_w).sum(-1, keepdims=True))
    a = _A_ref(x, A_wqkv, A_wo)
    b = _B_ref(x, B_w1, B_w2)
    return g * a + (1 - g) * b
```

```python
NAME = 'gated_mix__linear_attn_block__dense_activation_silu__prompt'
class Asm:
    def __init__(self):
        self.l = []
        self.nlabel = 0
    def __call__(self, s):
        for line in s.strip('\n').split('\n'):
            self.l.append('    ' + line.strip() if not line.strip().endswith(':') else line.strip())
    def label(self, base='L'):
        self.nlabel += 1
        return f'{base}_{self.nlabel}'
    def text(self): return '\n'.join(self.l) + '\n'

def kernel_desc(name, vgpr, accum, sgpr=96):
    return f'''.section .rodata,"a"
.p2align 6
.amdhsa_kernel {name}
  .amdhsa_next_free_vgpr {vgpr}
  .amdhsa_next_free_sgpr {sgpr}
  .amdhsa_accum_offset {accum}
  .amdhsa_group_segment_fixed_size 0
  .amdhsa_kernarg_size 80
  .amdhsa_user_sgpr_count 2
  .amdhsa_user_sgpr_kernarg_segment_ptr 1
  .amdhsa_system_sgpr_workgroup_id_x 1
.end_amdhsa_kernel
'''
def kernel_head(name):
    return f'''.text
.globl {name}
.p2align 8
.type {name},@function
{name}:
'''
```

```python
import re

TRANS = ('v_exp_f32', 'v_log_f32', 'v_rcp_f32', 'v_rsq_f32', 'v_sqrt_f32', 'v_sin_f32', 'v_cos_f32')


def regs(op):
    op = op.strip()
    op = op.lstrip('-')
    m = re.fullmatch(r'abs\((.*)\)', op)
    if m:
        op = m.group(1)
    m = re.fullmatch(r'([vsa])(\d+)', op)
    if m:
        return [(m.group(1), int(m.group(2)))]
    m = re.fullmatch(r'([vsa])\[(\d+):(\d+)\]', op)
    if m:
        return [(m.group(1), i) for i in range(int(m.group(2)), int(m.group(3)) + 1)]
    if op == 'vcc':
        return [('s', 'vcc')]
    if op == 'm0':
        return [('s', 'm0')]
    if op == 'exec':
        return [('s', 'exec')]
    return []


def parse(line):
    line = line.split(';')[0].strip()
    if not line or line.endswith(':') or line.startswith('.'):
        return None
    parts = line.split(None, 1)
    mn = parts[0]
    rest = parts[1] if len(parts) > 1 else ''
    ops = [o.strip() for o in rest.split(',')] if rest else []
    mods = ''
    if ops:
        mm = re.search(r'\s(op_sel|op_sel_hi|offen|offset|clamp|sc0|sc1|nt|lds|neg_lo|neg_hi|mul:|div:|row_|bitop3)', rest)
        if mm:
            mods = rest[mm.start():]
            rest2 = rest[:mm.start()]
            ops = [o.strip() for o in rest2.split(',')]
    return mn, ops, mods


def classify(mn, ops, mods):
    d, s = [], []
    if mn.startswith('v_mfma'):
        d = regs(ops[0])
        return 'mfma', d, regs(ops[1]) + regs(ops[2]), regs(ops[3])
    if mn.startswith('v_cmp'):
        return 'valu', regs(ops[0]), sum((regs(o) for o in ops[1:]), []), None
    if mn.startswith('v_readfirstlane') or mn.startswith('v_readlane'):
        return 'rdlane', regs(ops[0]), sum((regs(o) for o in ops[1:]), []), None
    if mn.startswith('v_'):
        d = regs(ops[0])
        s = sum((regs(o) for o in ops[1:]), [])
        if mn.startswith('v_fmac') or mn.startswith('v_dot2c'):
            s += d
        if mn.startswith('v_cndmask') and len(ops) == 3:
            s += [('s', 'vcc')]
        if mn.startswith('v_permlane'):
            d = regs(ops[0]) + regs(ops[1]); s = list(d)
            return 'perm', d, s, None
        return ('trans' if mn.replace('_e64', '').replace('_e32', '') in TRANS else 'valu'), d, s, None
    if mn.startswith('ds_read'):
        return 'dsr', regs(ops[0]), regs(ops[1]), None
    if mn.startswith('ds_write'):
        return 'dsw', [], sum((regs(o) for o in ops), []), None
    if mn.startswith('buffer_load') or mn.startswith('global_load'):
        if ' lds' in mods:
            return 'dma', [], sum((regs(o) for o in ops), []) + [('s', 'm0')], None
        return 'vload', regs(ops[0]), sum((regs(o) for o in ops[1:]), []), None
    if mn.startswith('buffer_store') or mn.startswith('buffer_atomic'):
        wide = mn.endswith('x4') or mn.endswith('x3')
        dd = regs(ops[0]) if (mn.startswith('buffer_atomic') and 'sc0' in mods) else []
        return 'vstore', dd, sum((regs(o) for o in ops), []), (regs(ops[0]) if wide else [])
    if mn.startswith('s_'):
        if mn in ('s_nop', 's_waitcnt', 's_barrier', 's_endpgm', 's_sleep', 's_setprio') or mn.startswith('s_branch') or mn.startswith('s_cbranch') or mn.startswith('s_cmp') or mn.startswith('s_bitcmp'):
            return 'salu', [], sum((regs(o) for o in ops), []), None
        return 'salu', regs(ops[0]), sum((regs(o) for o in ops[1:]), []), None
    raise ValueError('unknown instr ' + mn)


def check(text):
    errs = []
    t = 0
    lastw = {}
    mfmaC = {}
    stdata = {}
    mf_d = {}
    for ln, line in enumerate(text.split('\n'), 1):
        p = parse(line)
        if p is None:
            continue
        mn, ops, mods = p
        kind, d, s, extra = classify(mn, ops, mods)

        def need(reg, n, why):
            tw, kw = lastw[reg]
            gap = t - tw - 1
            if gap < n:
                errs.append(f'line {ln}: {line.strip()}  -- {why}: {reg} gap {gap} < {n}')

        allsrc = list(s) + (list(extra) if kind == 'mfma' else [])
        for r in allsrc:
            if r not in lastw:
                continue
            tw, kw = lastw[r]
            if r[0] in 'va':
                if kind == 'mfma' and kw in ('valu', 'trans', 'perm'):
                    need(r, 2, 'VALU->MFMA')
                if kw == 'mfma':
                    if kind == 'mfma' and r in extra and r not in s:
                        if not (extra == mf_d[r][1]):
                            need(r, 10, 'MFMA D->overlapping SrcC')
                    else:
                        need(r, 12, 'MFMA D->read')
                if kw == 'trans' and kind in ('valu', 'perm', 'rdlane'):
                    need(r, 1, 'trans->VALU')
                if kind == 'rdlane' and kw in ('valu', 'trans'):
                    need(r, 1, 'VALU->readlane')
                if kind == 'perm' and kw in ('valu', 'trans'):
                    need(r, 2, 'VALU->permlane')
            else:
                if kw in ('valu', 'rdlane'):
                    if kind in ('valu', 'trans'):
                        need(r, 2, 'VALU sgpr->VALU read')
                    if kind in ('vload', 'vstore', 'dma'):
                        need(r, 5, 'VALU sgpr->VMEM')
                if r == ('s', 'm0') and kind == 'dma' and kw == 'salu':
                    need(r, 1, 'M0->DMA')
        for r in d:
            if r in lastw and lastw[r][1] == 'mfma' and kind != 'mfma':
                need(r, 12, 'MFMA D->overwrite')
            if r in lastw and lastw[r][1] == 'mfma' and kind == 'mfma' and not (extra == mf_d[r][1]):
                need(r, 10, 'MFMA D->MFMA D WAW')
            if kind in ('valu', 'trans', 'perm') and r in mfmaC and t - mfmaC[r] - 1 < 7:
                errs.append(f'line {ln}: {line.strip()} -- MFMA SrcC WAR {r}')
            if kind in ('valu', 'trans', 'perm') and r in stdata and t - stdata[r] - 1 < 2:
                errs.append(f'line {ln}: {line.strip()} -- store data WAR {r}')
        for r in d:
            lastw[r] = (t, kind)
            if kind == 'mfma':
                mf_d[r] = (t, d)
        if kind == 'mfma':
            for r in extra:
                mfmaC[r] = t
        if kind == 'vstore' and extra:
            for r in extra:
                stdata[r] = t
        if mn == 's_nop':
            t += int(ops[0], 0) + 1
        else:
            t += 1
    return errs
```

```python
import sys
from asmlib import *
import hazard

WS_EPOCH = 0
WS_FH = 0x1000
WS_FP = 0x4000
WS_FO = 0x6000
WS_G = 0x8000
WS_PART = 0x10000
WS_A = 0x100000
WS_PROF = 0x900000
WS_SIZE = 0xA00000

SLOT = 40960
MISC = 147456
RED = 98304
NPRE = 18

SX, SW, SW2, SWO, SWS, SOUT, SMISC = 's[4:7]', 's[8:11]', 's[12:15]', 's[16:19]', 's[20:23]', 's[24:27]', 's[28:31]'
sWAVE, sR, sTYPE, sC, sR2, sC2, sTAG, sBOUND = 's56', 's57', 's58', 's59', 's60', 's61', 's62', 's63'
vLANE = 'v254'


class Q:
    def __init__(self, a, name, mx):
        self.a, self.name, self.mx = a, name, mx
        self.q = []
    def push(self, tag):
        self.q.append(tag)
        assert len(self.q) <= self.mx, (self.name, len(self.q))
    def wait(self, *tags):
        idx = max([self.q.index(t) for t in tags if t in self.q], default=-1)
        if idx < 0:
            return
        n = len(self.q) - 1 - idx
        self.a(f's_waitcnt {self.name}({n})')
        self.q = self.q[idx + 1:]
    def drain(self):
        self.a(f's_waitcnt {self.name}(0)')
        self.q = []
    def reset(self):
        self.q = []


def vr(b, n=4):
    return f'v[{b}:{b + n - 1}]'


def gen(profile=False):
    a = Asm()
    K = NAME + '_kernel'

    def stamp(i):
        if profile:
            a(f's_memrealtime s[34:35]\ns_waitcnt lgkmcnt(0)\ns_mov_b32 s{80 + i}, s34')

    def srd(name, lo, size):
        b = int(name[2:name.index(':')])
        a(f's_mov_b32 s{b}, s{lo}\ns_mov_b32 s{b + 1}, s{lo + 1}\ns_mov_b32 s{b + 2}, {size}\ns_mov_b32 s{b + 3}, 0x20000')

    def poll(vaddr, soff, vtmp='v255'):
        l0, l1 = a.label('L_poll'), a.label('L_polled')
        a(f'''
        {l0}:
        buffer_load_dword {vtmp}, {vaddr}, {SWS}, {soff} offen sc1
        s_waitcnt vmcnt(0)
        v_cmp_ne_u32 vcc, {sTAG}, {vtmp}
        s_cbranch_vccz {l1}
        s_sub_u32 {sBOUND}, {sBOUND}, 1
        s_cbranch_scc1 {l1}
        s_sleep 1
        s_branch {l0}
        {l1}:
        ''')

    def flag(soff, vz='v253', vt='v255'):
        a(f'''
        v_mov_b32 {vz}, 0
        v_mov_b32 {vt}, {sTAG}
        s_mov_b64 exec, 1
        buffer_store_dword {vt}, {vz}, {SWS}, {soff} offen sc1
        s_mov_b64 exec, -1
        ''')

    def rest_srds():
        srd(SW2, 46, 1409024)
        srd(SWO, 40, 524288)
        srd(SWS, 54, WS_SIZE)
        srd(SOUT, 50, 2097152)

    def make_tag():
        a(f's_mul_i32 {sTAG}, {sTAG}, 0x9E3779B1\ns_add_u32 {sTAG}, {sTAG}, 0x7F4A7C15\ns_mov_b32 {sBOUND}, 0x80000')

    a(f'''
    s_cmp_ge_u32 s2, 256
    s_cbranch_scc1 L_end
    s_load_dwordx16 s[36:51], s[0:1], 0
    s_load_dwordx4 s[52:55], s[0:1], 64
    v_lshrrev_b32 v1, 6, v0
    v_and_b32 {vLANE}, 63, v0
    s_and_b32 s64, s2, 7
    v_readfirstlane_b32 {sWAVE}, v1
    s_lshr_b32 s65, s2, 3
    s_and_b32 s66, s65, 3
    s_lshr_b32 {sR}, s64, 1
    s_lshl_b32 {sR}, {sR}, 2
    s_add_u32 {sR}, {sR}, s66
    s_bfe_u32 {sTYPE}, s65, 0x10002
    s_and_b32 {sC}, s64, 1
    s_lshl_b32 {sC}, {sC}, 2
    s_lshr_b32 s67, s65, 3
    s_add_u32 {sC}, {sC}, s67
    s_lshl_b32 {sR2}, s64, 2
    s_add_u32 {sR2}, {sR2}, s66
    s_lshr_b32 {sC2}, s65, 2
    ''')
    if profile:
        for i in range(16):
            a(f's_mov_b32 s{80 + i}, 0')
        a('s_memrealtime s[34:35]\ns_waitcnt lgkmcnt(0)\ns_mov_b32 s95, s34')
    a(f'''
    s_cmp_lt_u32 {sWAVE}, 4
    s_cbranch_scc1 L_compute
    ''')

    if profile:
        pass
    VX = [200, 201, 202, 203]
    VW = [204, 205]
    VB = [206, 207]
    VGATE = 208
    VGA = 216
    a(f'''
    s_sub_u32 s68, {sWAVE}, 4
    s_cmp_eq_u32 {sTYPE}, 1
    s_movk_i32 s69, 3072
    s_cmov_b32 s69, 2752
    v_lshrrev_b32 v1, 3, {vLANE}
    v_and_b32 v2, 7, {vLANE}
    v_lshrrev_b32 v3, 4, {vLANE}
    v_xor_b32 v4, v2, v3
    v_lshlrev_b32 v5, 10, v1
    v_lshl_add_u32 v{VX[0]}, v4, 4, v5
    v_xor_b32 v6, 64, v{VX[0]}
    v_add_u32 v{VX[1]}, 7168, v6
    v_add_u32 v{VX[2]}, 14336, v{VX[0]}
    v_add_u32 v{VX[3]}, 21504, v6
    v_and_b32 v3, 1, v3
    v_lshlrev_b32 v3, 2, v3
    v_xor_b32 v4, v2, v3
    v_lshlrev_b32 v4, 4, v4
    s_lshl_b32 s64, s68, 4
    v_add_u32 v1, s64, v1
    v_mul_u32_u24 v6, s69, v1
    v_add_u32 v{VW[0]}, v6, v4
    s_lshl_b32 s64, s69, 3
    s_sub_u32 s64, s64, 1024
    v_add_u32 v{VW[1]}, s64, v{VW[0]}
    v_lshl_add_u32 v{VB[0]}, v1, 10, v4
    v_add_u32 v{VB[1]}, 7168, v{VB[0]}
    s_lshl_b32 s70, {sR}, 17
    s_lshl_b32 s64, s68, 15
    s_add_u32 s70, s70, s64
    s_lshl_b32 s74, s69, 6
    s_lshl_b32 s75, s68, 12
    s_lshl_b32 s76, s68, 11
    s_add_u32 s76, s76, 16384
    s_add_u32 s77, s76, 8192
    s_add_u32 s78, s76, 16384
    s_mov_b32 s79, 0
    s_mov_b32 s33, 0
    s_mov_b32 s32, -1
    s_cmp_eq_u32 {sTYPE}, 1
    s_cbranch_scc1 L_h_ffn
    s_lshl_b32 s71, {sC}, 7
    s_add_u32 s72, s71, 1024
    s_add_u32 s73, s71, 2048
    s_branch L_h_go
    L_h_ffn:
    s_mul_i32 s71, {sC}, 384
    s_add_u32 s72, s71, 128
    s_add_u32 s73, s71, 256
    s_cmp_lg_u32 {sC}, 7
    s_cbranch_scc1 L_h_go
    s_mov_b32 s32, 0
    s_mov_b32 s77, s78
    s_cmp_eq_u32 s68, 0
    s_cselect_b32 s33, 1, 0
    L_h_go:
    s_waitcnt lgkmcnt(0)
    s_load_dword {sTAG}, s[54:55], {WS_EPOCH}
    ''')
    srd(SX, 36, 2097152)
    a(f'''
    s_cmp_eq_u32 {sTYPE}, 1
    s_cselect_b64 s[8:9], s[44:45], s[38:39]
    s_mov_b32 s10, 1572864
    s_cmov_b32 s10, 1409024
    s_mov_b32 s11, 0x20000
    s_mov_b64 s[96:97], s[8:9]
    s_and_b32 s98, s10, s32
    s_mov_b32 s99, 0x20000
    s_cmp_eq_u32 s33, 0
    s_cbranch_scc1 L_h_nogate0
    ''')
    srd(SMISC, 48, 1024)
    a(f'v_lshlrev_b32 v1, 1, {vLANE}')
    for j in range(8):
        a(f'buffer_load_ushort v{VGATE + j}, v1, {SMISC}, 0 offen offset:{128 * j}')
    a(f'''
    v_lshlrev_b32 v2, 5, {vLANE}
    v_and_b32 v2, 64, v2
    v_lshl_add_u32 v{VGA}, {vLANE}, 7, v2
    v_add_u32 v{VGA}, {16384 + 8192}, v{VGA}
    v_xor_b32 v{VGA + 1}, 64, v{VGA}
    L_h_nogate0:
    ''')

    def issue_stage():
        a('s_add_u32 m0, s79, s75\ns_nop 0')
        for j in range(4):
            a(f'buffer_load_dwordx4 v{VX[j]}, {SX}, s70 offen offset:{1024 * j} lds')
        prev = ('s70', '128')
        for b in range(3):
            a(f's_add_u32 m0, s79, s{76 + b}\ns_add_u32 {prev[0]}, {prev[0]}, {prev[1]}')
            sw = SW if b == 0 else 's[96:99]'
            a(f'buffer_load_dwordx4 v{VW[0]}, {sw}, s{71 + b} offen lds')
            a(f'buffer_load_dwordx4 v{VW[1]}, {sw}, s{71 + b} offen offset:1024 lds')
            prev = (f's{71 + b}', 's74')
        a(f's_add_u32 s73, s73, s74\ns_add_u32 s79, s79, {SLOT}\ns_cmp_eq_u32 s79, {4 * SLOT}\ns_cselect_b32 s79, 0, s79')

    a('s_mov_b32 s64, 4\nL_h_pro:')
    issue_stage()
    a('s_sub_u32 s64, s64, 1\ns_cmp_lg_u32 s64, 0\ns_cbranch_scc1 L_h_pro')
    rest_srds()
    a('s_cmp_eq_u32 s33, 0\ns_cbranch_scc1 L_h_nogate1\ns_waitcnt vmcnt(40)')
    for j in range(4):
        if j == 2:
            a(f'v_add_u32 v{VGA + 2}, {2 * SLOT}, v{VGA}\nv_add_u32 v{VGA + 3}, {2 * SLOT}, v{VGA + 1}')
        o = (j & 1) * SLOT
        a(f'ds_write_b16 v{VGA + (j // 2) * 2}, v{VGATE + j} offset:{o}')
        a(f'ds_write_b16 v{VGA + (j // 2) * 2 + 1}, v{VGATE + j} offset:{o}')
    a('L_h_nogate1:')
    a('s_waitcnt vmcnt(30) lgkmcnt(0)')
    make_tag()
    stamp(0)
    a('s_barrier')
    a('s_mov_b32 s64, 4\nL_h_loop:')
    a('s_waitcnt vmcnt(20) lgkmcnt(0)\ns_barrier')
    a('s_cmp_eq_u32 s33, 0\ns_cbranch_scc1 L_h_nogate2')
    a(f'''
    v_add_u32 v1, s79, v{VGA}
    v_add_u32 v2, s79, v{VGA + 1}
    ds_write_b16 v1, v{VGATE + 4}
    ds_write_b16 v2, v{VGATE + 4}
    v_mov_b32 v{VGATE + 4}, v{VGATE + 5}
    v_mov_b32 v{VGATE + 5}, v{VGATE + 6}
    v_mov_b32 v{VGATE + 6}, v{VGATE + 7}
    L_h_nogate2:
    ''')
    issue_stage()
    a('s_sub_u32 s64, s64, 1\ns_cmp_lg_u32 s64, 0\ns_cbranch_scc1 L_h_loop')
    a(f's_lshl_b32 s65, s68, 11\ns_lshl_b32 s66, {sC2}, 7\ns_mov_b32 s64, 4')
    a('L_h_bloop:')
    a('s_cmp_eq_u32 s64, 1\ns_cselect_b32 s67, 3, 5\ns_cbranch_scc1 L_h_nowait')
    a('s_waitcnt vmcnt(20) lgkmcnt(0)\nL_h_nowait:\ns_barrier')
    a(f'''
    L_h_bin:
    s_mov_b32 m0, s65
    s_add_u32 s65, s65, 8192
    buffer_load_dwordx4 v{VB[0]}, {SW2}, s66 offen lds
    buffer_load_dwordx4 v{VB[1]}, {SW2}, s66 offen offset:1024 lds
    s_add_u32 s66, s66, 65536
    s_sub_u32 s67, s67, 1
    s_cmp_lg_u32 s67, 0
    s_cbranch_scc1 L_h_bin
    s_sub_u32 s64, s64, 1
    s_cmp_lg_u32 s64, 0
    s_cbranch_scc1 L_h_bloop
    ''')
    stamp(1)
    a(f's_cmp_eq_u32 {sTYPE}, 1\ns_cbranch_scc1 L_phase2')
    IDN, PQ, PP, KVF = 120, 100, 128, 16
    a(f'''
    v_and_b32 v1, 31, {vLANE}
    v_lshrrev_b32 v2, 5, {vLANE}
    v_lshlrev_b32 v3, 2, v2
    v_sub_u32 v3, v1, v3
    v_subrev_u32 v4, 4, v3
    v_cmp_gt_u32 vcc, 8, v3
    s_nop 1
    v_cndmask_b32 v4, v4, v3, vcc
    v_and_b32 v5, 4, v3
    v_cmp_eq_u32 vcc, 0, v5
    v_cmp_gt_u32 s[64:65], 12, v3
    s_and_b64 vcc, vcc, s[64:65]
    v_mov_b32 v5, 64
    s_nop 0
    v_cndmask_b32 v4, v5, v4, vcc
    v_and_b32 v5, 1, v4
    v_lshlrev_b32 v5, 4, v5
    v_mov_b32 v6, 0x3f80
    v_lshlrev_b32 v5, v5, v6
    v_lshrrev_b32 v4, 1, v4
    ''')
    for p in range(4):
        a(f'v_cmp_eq_u32 vcc, {p}, v4\ns_nop 1\nv_cndmask_b32 v{IDN + p}, 0, v5, vcc')
    a(f'''
    v_min_u32 v3, 16, v1
    v_add_u32 v4, 16, v1
    v_cmp_gt_u32 vcc, 16, v1
    s_bitcmp1_b32 s68, 0
    s_cselect_b64 s[64:65], -1, 0
    v_cndmask_b32 v4, 0, v4, vcc
    v_cndmask_b32 v3, v3, v4, s[64:65]
    v_lshl_add_u32 v3, v2, 5, v3
    v_lshlrev_b32 v7, 4, v3
    v_min_u32 v8, 15, {vLANE}
    v_lshlrev_b32 v8, 2, v8
    v_lshlrev_b32 v220, 4, {vLANE}
    s_lshr_b32 s64, s68, 1
    s_lshl_b32 s64, s64, 12
    s_and_b32 s65, s68, 1
    s_lshl_b32 s65, s65, 10
    s_add_u32 s64, s64, s65
    s_add_u32 s64, s64, {MISC}
    v_add_u32 v10, s64, v220
    s_lshl_b32 s66, {sC}, 2
    s_add_u32 s66, s66, s68
    s_lshl_b32 s67, s66, 7
    s_add_u32 s67, s67, {WS_FP}
    s_lshl_b32 s66, s66, 14
    s_add_u32 s66, s66, {WS_PART}
    s_barrier
    s_waitcnt vmcnt(0)
    s_barrier
    ''')
    for tl in range(4):
        a(f'ds_read_b128 {vr(PQ + 4 * tl)}, v10 offset:{(tl >> 1) * 8192 + (tl & 1) * 2048}')
    stamp(2)
    poll('v8', 's67')
    stamp(3)
    vm = Q(a, 'vmcnt', 63)
    for r in range(16):
        a(f'buffer_load_dwordx4 {vr(PP + 4 * r)}, v7, {SWS}, s66 offen offset:{(r & 3) * 1024} sc1')
        vm.push(r)
        if r & 3 == 3 and r < 15:
            a('s_add_u32 s66, s66, 4096')
    a(f'''
    s_lshl_b32 s64, {sR}, 4
    s_add_u32 s64, s64, s68
    s_mul_i32 s64, s64, 30
    s_add_u32 s64, s64, {sC}
    s_lshl_b32 s64, s64, 10
    s_add_u32 s64, s64, {WS_A + 22 * 1024}
    s_lshl_b32 s65, {sR}, 2
    s_add_u32 s65, s65, s68
    s_lshl_b32 s65, s65, 7
    s_lshl_b32 s67, {sC}, 2
    s_add_u32 s65, s65, s67
    s_add_u32 s65, s65, {WS_FO}
    s_mov_b32 s67, 0x358637bd
    ''')
    for r in range(16):
        vm.wait(r)
        a(f'v_mfma_f32_32x32x16_bf16 v[0:15], {vr(IDN)}, {vr(PP + 4 * r)}, {"0" if r == 0 else "v[0:15]"}')
    a('s_nop 11')
    for p in range(4):
        a(f'v_cvt_pk_bf16_f32 v{KVF + p}, v{2 * p}, v{2 * p + 1}')
    a('s_waitcnt lgkmcnt(0)\ns_nop 0')
    for tl in range(4):
        a(f'v_mfma_f32_32x32x16_bf16 {vr(32 + 16 * tl, 16)}, {vr(KVF)}, {vr(PQ + 4 * tl)}, 0')
    a('s_nop 8')
    for tl in range(4):
        d = 32 + 16 * tl
        if tl:
            a('s_nop 3')
        a(f'v_add_f32 v{d + 8}, s67, v{d + 8}\nv_rcp_f32 v{d + 8}, v{d + 8}\ns_nop 0')
        for p in range(4):
            a(f'v_pk_mul_f32 {vr(d + 2 * p, 2)}, {vr(d + 2 * p, 2)}, {vr(d + 8, 2)} op_sel_hi:[1,0]')
        for p in range(4):
            a(f'v_cvt_pk_bf16_f32 v{d + 12 + p}, v{d + 2 * p}, v{d + 2 * p + 1}')
        a(f'buffer_store_dwordx4 {vr(d + 12)}, v220, {SWS}, s64 offen sc1')
        a('s_add_u32 s64, s64, 122880')
    a('s_waitcnt vmcnt(0)')
    flag('s65')
    stamp(4)
    a('s_branch L_phase2')

    FX = [[96, 100], [104, 108]]
    FW = [[112, 116, 120], [124, 128, 132]]
    VXA = [[136, 137, 138, 139], [140, 141, 142, 143]]
    VWA = [144, 145]
    a(f'''
    L_compute:
    s_lshr_b32 s68, {sWAVE}, 1
    s_and_b32 s69, {sWAVE}, 1
    v_and_b32 v1, 31, {vLANE}
    v_lshrrev_b32 v2, 5, {vLANE}
    v_bfe_u32 v3, {vLANE}, 1, 3
    v_xor_b32 v3, v2, v3
    s_lshl_b32 s64, s68, 6
    v_add_u32 v1, s64, v1
    v_lshlrev_b32 v1, 7, v1
    v_lshl_add_u32 v{VXA[0][0]}, v3, 4, v1
    ''')
    for ks in range(1, 4):
        a(f'v_xor_b32 v{VXA[0][ks]}, {32 * ks}, v{VXA[0][0]}')
    for ks in range(4):
        a(f'v_add_u32 v{VXA[1][ks]}, {2 * SLOT}, v{VXA[0][ks]}')
    a(f'''
    v_bfe_u32 v3, {vLANE}, 2, 2
    v_lshl_add_u32 v4, v2, 3, v3
    v_lshlrev_b32 v4, 7, v4
    v_lshrrev_b32 v3, 1, v3
    v_xor_b32 v3, s69, v3
    v_lshl_add_u32 v4, v3, 6, v4
    v_bfe_u32 v3, {vLANE}, 4, 1
    v_lshl_add_u32 v4, v3, 5, v4
    v_and_b32 v3, 3, {vLANE}
    v_lshl_add_u32 v4, v3, 3, v4
    v_add_u32 v{VWA[0]}, 16384, v4
    v_add_u32 v{VWA[1]}, {16384 + 2 * SLOT}, v4
    s_waitcnt lgkmcnt(0)
    s_load_dword {sTAG}, s[54:55], {WS_EPOCH}
    ''')
    rest_srds()
    srd(SMISC, 52, 256)
    for i in range(96):
        a(f'v_mov_b32 v{i}, 0')
    a('s_waitcnt lgkmcnt(0)')
    make_tag()
    stamp(0)
    a('s_barrier')
    a(f'''
    s_cmp_lg_u32 {sWAVE}, 0
    s_cbranch_scc1 L_c_noatom
    v_mov_b32 v146, 1
    v_mov_b32 v147, 0
    s_mov_b64 exec, 1
    buffer_atomic_add v146, v147, {SMISC}, 0 offen sc0
    s_mov_b64 exec, -1
    L_c_noatom:
    ''')

    def reads(stage, ks, buf):
        st, par = (stage >> 1) & 1, stage & 1
        xo = par * SLOT
        wo = par * SLOT + ks * 2048
        r = []
        r.append((f'ds_read_b128 {vr(FX[buf][0])}, v{VXA[st][ks]} offset:{xo}', ('x', buf, 0)))
        r.append((f'ds_read_b64_tr_b16 {vr(FW[buf][0], 2)}, v{VWA[st]} offset:{wo}', ('wa', buf, 0)))
        r.append((f'ds_read_b64_tr_b16 {vr(FW[buf][0] + 2, 2)}, v{VWA[st]} offset:{wo + 512}', ('w', buf, 0)))
        r.append((f'ds_read_b128 {vr(FX[buf][1])}, v{VXA[st][ks]} offset:{xo + 4096}', ('x', buf, 1)))
        for b in (1, 2):
            r.append((f'ds_read_b64_tr_b16 {vr(FW[buf][b], 2)}, v{VWA[st]} offset:{wo + b * 8192}', ('wa', buf, b)))
            r.append((f'ds_read_b64_tr_b16 {vr(FW[buf][b] + 2, 2)}, v{VWA[st]} offset:{wo + b * 8192 + 512}', ('w', buf, b)))
        return r

    def mainloop(attn, lab):
        lg = Q(a, 'lgkmcnt', 15)
        for ins, tag in reads(0, 0, 0):
            a(ins); lg.push(tag)
        a(f's_mov_b32 s64, 2\n{lab}:')
        for stage in range(4):
            for ks in range(4):
                buf = ks & 1
                nxt = reads(stage, ks + 1, buf ^ 1) if ks < 3 else reads((stage + 1) & 3, 0, buf ^ 1)
                order = [(0, 0), (0, 1), (1, 0), (1, 1), (2, 0), (2, 1)]
                start = 0 if ks < 3 else 2
                for i, (b, m) in enumerate(order):
                    lg.wait(('x', buf, m), ('w', buf, b))
                    acc = vr(16 * (2 * b + m), 16)
                    x, w = vr(FX[buf][m]), vr(FW[buf][b])
                    if attn and b > 0:
                        a(f'v_mfma_f32_32x32x16_bf16 {acc}, {x}, {w}, {acc}')
                    else:
                        a(f'v_mfma_f32_32x32x16_bf16 {acc}, {w}, {x}, {acc}')
                    if ks == 3 and i == 1:
                        lg.drain()
                        a('s_barrier')
                    if start <= i + (1 if ks == 3 else 0) and nxt:
                        n = 2 if ks < 3 else (3 if i < 3 else 2)
                        for ins, tag in nxt[:n]:
                            a(ins); lg.push(tag)
                        nxt = nxt[n:]
                assert not nxt
        a(f's_sub_u32 s64, s64, 1\ns_cmp_lg_u32 s64, 0\ns_cbranch_scc1 {lab}')
        a('s_waitcnt lgkmcnt(0)')

    def epoch_update():
        lab = a.label('L_noep')
        a(f'''
        s_cmp_lg_u32 {sWAVE}, 0
        s_cbranch_scc1 {lab}
        s_waitcnt vmcnt(0)
        v_readfirstlane_b32 s64, v146
        s_cmp_lg_u32 s64, 255
        s_cbranch_scc1 {lab}
        s_mov_b32 s64, {WS_EPOCH}
        ''')
        flag('s64')
        a(f'{lab}:')

    a(f's_cmp_eq_u32 {sTYPE}, 1\ns_cbranch_scc1 L_c_ffn')
    mainloop(True, 'L_ml_attn')
    stamp(1)
    epoch_update()
    PK, VF, ONE, KV, ZZ, T = 96, 112, 128, 160, 176, 192
    a(f'''
    s_mov_b32 s70, 0x3fb8aa3b
    s_mov_b32 s72, 0x358637bd
    s_mov_b32 s74, 0x0000ffff
    s_mov_b32 s75, 0x0000ffff
    v_lshlrev_b32 v148, 4, {vLANE}
    s_lshl_b32 s64, {sWAVE}, 12
    s_add_u32 s64, s64, {MISC}
    v_add_u32 v149, s64, v148
    v_xor_b32 v150, 8192, v149
    s_lshl_b32 s64, {sC}, 2
    s_lshl_b32 s65, s69, 1
    s_add_u32 s64, s64, s65
    s_add_u32 s64, s64, s68
    s_lshl_b32 s65, s64, 7
    s_lshl_b32 s66, {sR}, 2
    s_add_u32 s65, s65, s66
    s_add_u32 s65, s65, {WS_FP}
    s_lshl_b32 s64, s64, 4
    s_add_u32 s64, s64, {sR}
    s_lshl_b32 s64, s64, 10
    s_add_u32 s64, s64, {WS_PART}
    ''')
    for p in range(4):
        a(f'v_mov_b32 v{ONE + p}, 0x3f803f80')
    assert (MISC >> 13) & 1 == 0

    def phi8(src, dst):
        for p in range(4):
            a(f'v_pk_mul_f32 {vr(T + 2 * p, 2)}, {vr(src + 2 * p, 2)}, s[70:71] op_sel_hi:[1,0]')
        for i in range(8):
            a(f'v_exp_f32 v{T + i}, v{T + i} clamp')
        for i in range(8):
            a(f'v_max_f32 v{src + i}, s72, v{src + i}')
        for p in range(4):
            a(f'v_pk_add_f32 {vr(T + 2 * p, 2)}, {vr(T + 2 * p, 2)}, {vr(src + 2 * p, 2)}')
        for p in range(4):
            a(f'v_cvt_pk_bf16_f32 v{dst + p}, v{T + 2 * p}, v{T + 2 * p + 1}')

    for g in range(4):
        phi8(32 + 8 * g, PK + 4 * g)
        for p in range(4):
            a(f'v_cvt_pk_bf16_f32 v{VF + 4 * g + p}, v{64 + 8 * g + 2 * p}, v{64 + 8 * g + 2 * p + 1}')
        a('s_nop 1')
        a(f'v_mfma_f32_32x32x16_bf16 {vr(KV, 16)}, {vr(PK + 4 * g)}, {vr(VF + 4 * g)}, {"0" if g == 0 else vr(KV, 16)}')
        a(f'v_mfma_f32_32x32x16_bf16 {vr(ZZ, 16)}, {vr(PK + 4 * g)}, {vr(ONE)}, {"0" if g == 0 else vr(ZZ, 16)}')
    PQW = 208
    phi8(0, PQW)
    for j in range(8):
        a(f'v_cndmask_b32 v{KV + j}, v{ZZ + j}, v{KV + j}, s[74:75]')
    for j in range(8, 16):
        a(f'v_cndmask_b32 v{KV + j}, v{KV + j}, v{ZZ + j}, s[74:75]')
    a(f'''
    s_cmp_eq_u32 s68, 0
    s_cbranch_scc1 L_a_wr0
    ds_write_b128 v150, {vr(KV)}
    ds_write_b128 v150, {vr(KV + 4)} offset:1024
    ''')
    for j in range(8):
        a(f'v_mov_b32 v{KV + j}, v{KV + 8 + j}')
    a(f'''
    s_branch L_a_wr1
    L_a_wr0:
    ds_write_b128 v150, {vr(KV + 8)}
    ds_write_b128 v150, {vr(KV + 12)} offset:1024
    L_a_wr1:
    s_waitcnt lgkmcnt(0)
    s_barrier
    ds_read_b128 {vr(ZZ)}, v149
    ds_read_b128 {vr(ZZ + 4)}, v149 offset:1024
    s_waitcnt lgkmcnt(0)
    ''')
    for p in range(4):
        a(f'v_pk_add_f32 {vr(KV + 2 * p, 2)}, {vr(KV + 2 * p, 2)}, {vr(ZZ + 2 * p, 2)}')
    for p in range(4):
        a(f'v_cvt_pk_bf16_f32 v{KV + 8 + p}, v{KV + 2 * p}, v{KV + 2 * p + 1}')
    a(f'buffer_store_dwordx4 {vr(KV + 8)}, v148, {SWS}, s64 offen sc1')
    for g in range(1, 4):
        phi8(8 * g, PQW + 4 * g)
    for g in range(4):
        a(f'ds_write_b128 v149, {vr(PQW + 4 * g)} offset:{1024 * g}')
    a('s_waitcnt vmcnt(0)')
    flag('s65')
    stamp(2)
    a('s_waitcnt lgkmcnt(0)\ns_barrier\ns_branch L_phase2')

    a('L_c_ffn:')
    mainloop(False, 'L_ml_ffn')
    stamp(1)
    epoch_update()
    a(f'''
    s_mov_b32 s70, 0xbfb8aa3b
    v_lshlrev_b32 v148, 4, {vLANE}
    s_lshl_b32 s64, {sR}, 2
    s_lshl_b32 s65, s68, 1
    s_add_u32 s64, s64, s65
    s_lshl_b32 s64, s64, 2
    s_lshl_b32 s65, s69, 1
    s_add_u32 s64, s64, s65
    s_mul_i32 s64, s64, 30
    s_mul_i32 s65, {sC}, 3
    s_add_u32 s64, s64, s65
    s_lshl_b32 s64, s64, 10
    s_add_u32 s72, s64, {WS_A}
    s_add_u32 s73, s72, 30720
    s_add_u32 s74, s72, 122880
    s_add_u32 s75, s73, 122880
    s_lshl_b32 s65, {sR}, 1
    s_add_u32 s65, s65, s68
    s_lshl_b32 s65, s65, 1
    s_add_u32 s65, s65, s69
    s_lshl_b32 s65, s65, 7
    s_lshl_b32 s66, {sC}, 2
    s_add_u32 s65, s65, s66
    s_add_u32 s65, s65, {WS_FH}
    ''')
    T = 192

    def silu8(src, dst):
        for p in range(4):
            a(f'v_pk_mul_f32 {vr(T + 2 * p, 2)}, {vr(src + 2 * p, 2)}, s[70:71] op_sel_hi:[1,0]')
        for i in range(8):
            a(f'v_exp_f32 v{T + i}, v{T + i}')
        for p in range(4):
            a(f'v_pk_add_f32 {vr(T + 2 * p, 2)}, {vr(T + 2 * p, 2)}, 1.0 op_sel_hi:[1,0]')
        for i in range(8):
            a(f'v_rcp_f32 v{T + i}, v{T + i}')
        for p in range(4):
            a(f'v_pk_mul_f32 {vr(T + 2 * p, 2)}, {vr(T + 2 * p, 2)}, {vr(src + 2 * p, 2)}')
        for p in range(4):
            a(f'v_cvt_pk_bf16_f32 v{dst + p}, v{T + 2 * p}, v{T + 2 * p + 1}')

    n = 0
    for b in range(3):
        for m in range(2):
            for f in range(2):
                dst = 96 + 4 * (n % 8); n += 1
                silu8(16 * (2 * b + m) + 8 * f, dst)
                a(f'buffer_store_dwordx4 {vr(dst)}, v148, {SWS}, s{72 + 2 * m + f} offen offset:{1024 * b} sc1')
        if b == 0:
            a(f's_cmp_eq_u32 {sC}, 7\ns_cbranch_scc1 L_f_gate')
    a('s_branch L_f_flag')
    a(f'''
    L_f_gate:
    v_mul_f32 v{T}, s70, v32
    v_mul_f32 v{T + 1}, s70, v48
    v_exp_f32 v{T}, v{T}
    v_exp_f32 v{T + 1}, v{T + 1}
    s_lshl_b32 s64, {sR}, 9
    v_add_f32 v{T}, 1.0, v{T}
    v_add_f32 v{T + 1}, 1.0, v{T + 1}
    v_rcp_f32 v{T}, v{T}
    v_rcp_f32 v{T + 1}, v{T + 1}
    s_lshl_b32 s66, s68, 8
    s_add_u32 s64, s64, s66
    s_lshl_b32 s66, s69, 13
    s_add_u32 s64, s64, s66
    s_add_u32 s64, s64, {WS_G}
    v_lshlrev_b32 v149, 2, {vLANE}
    s_mov_b32 exec_hi, 0
    buffer_store_dword v{T}, v149, {SWS}, s64 offen sc1
    buffer_store_dword v{T + 1}, v149, {SWS}, s64 offen offset:128 sc1
    s_mov_b64 exec, -1
    L_f_flag:
    s_waitcnt vmcnt(0)
    ''')
    flag('s65')
    stamp(2)

    AH, AO, AF, BF = 0, 32, 64, 152
    VB2 = [168, 169]
    VL16, VFL, VBR, VG, VOMG = 170, 171, 172, 174, 176
    a(f'''
    L_phase2:
    s_and_b32 s68, {sWAVE}, 3
    s_lshr_b32 s69, {sWAVE}, 2
    v_lshrrev_b32 v2, 5, {vLANE}
    v_bfe_u32 v3, {vLANE}, 2, 2
    v_lshl_add_u32 v4, v2, 2, v3
    v_lshlrev_b32 v4, 7, v4
    v_lshrrev_b32 v3, 1, v3
    v_lshl_add_u32 v4, v3, 6, v4
    v_bfe_u32 v3, {vLANE}, 4, 1
    v_lshl_add_u32 v4, v3, 5, v4
    v_and_b32 v3, 3, {vLANE}
    v_lshl_add_u32 v4, v3, 3, v4
    s_lshl_b32 s64, s68, 11
    v_add_u32 v{VB2[0]}, s64, v4
    v_xor_b32 v{VB2[1]}, 64, v{VB2[0]}
    v_lshlrev_b32 v{VL16}, 4, {vLANE}
    v_min_u32 v{VFL}, 7, {vLANE}
    v_lshlrev_b32 v{VFL}, 2, v{VFL}
    v_lshrrev_b32 v1, 3, {vLANE}
    v_and_b32 v2, 7, {vLANE}
    v_bfe_u32 v3, {vLANE}, 4, 1
    v_lshlrev_b32 v3, 2, v3
    v_xor_b32 v2, v2, v3
    v_lshlrev_b32 v2, 4, v2
    s_lshl_b32 s64, {sWAVE}, 3
    v_add_u32 v1, s64, v1
    v_lshl_add_u32 v{VBR}, v1, 10, v2
    v_and_b32 v5, 31, {vLANE}
    v_lshlrev_b32 v5, 2, v5
    s_lshl_b32 s64, {sR2}, 1
    s_add_u32 s64, s64, s69
    s_lshl_b32 s65, s64, 7
    s_lshl_b32 s64, s64, 2
    s_add_u32 s64, s64, s68
    s_mul_i32 s70, s64, 30720
    s_add_u32 s70, s70, {WS_A}
    s_lshr_b32 s66, s68, 1
    s_lshl_b32 s67, s66, 13
    s_add_u32 s65, s65, s67
    s_add_u32 s65, s65, {WS_G}
    s_lshl_b32 s64, {sR2}, 1
    s_add_u32 s64, s64, s66
    s_lshl_b32 s64, s64, 7
    s_add_u32 s64, s64, {WS_FH}
    s_lshr_b32 s71, {sR2}, 1
    s_lshl_b32 s71, s71, 2
    s_add_u32 s71, s71, s68
    s_lshl_b32 s71, s71, 7
    s_add_u32 s71, s71, {WS_FO}
    s_lshl_b32 s72, {sWAVE}, 10
    s_lshl_b32 s73, {sC2}, 7
    ''')
    stamp(5)
    poll(f'v{VFL}', 's64')
    stamp(6)
    vm = Q(a, 'vmcnt', 63)
    lg = Q(a, 'lgkmcnt', 15)
    a(f'buffer_load_dword v{VG}, v5, {SWS}, s65 offen sc1'); vm.push('g')

    def aload(t, slot):
        a(f'buffer_load_dwordx4 {vr(AF + 4 * slot)}, v{VL16}, {SWS}, s70 offen offset:{(t & 3) * 1024} sc1' if t < 22 else
          f'buffer_load_dwordx4 {vr(AF + 4 * slot)}, v{VL16}, {SWS}, s70 offen offset:{((t - 22) & 3) * 1024} sc1')
        vm.push(('A', t))

    for t in range(22):
        aload(t, t)
        if t & 3 == 3:
            a('s_add_u32 s70, s70, 4096')
    a('s_add_u32 s70, s70, 2048')
    a(f's_cmp_eq_u32 {sTYPE}, 0\ns_cbranch_scc1 L_p2_noc\ns_barrier\nL_p2_noc:')

    def baddr(t):
        return t * 8192 if t < NPRE else (t - NPRE) * 8192

    cur_base = [0]

    def breads(t):
        ad = baddr(t)
        base = ad & ~0xffff
        if base != cur_base[0]:
            dlt = base - cur_base[0]
            for T in range(2):
                if dlt > 0:
                    a(f'v_add_u32 v{VB2[T]}, {dlt}, v{VB2[T]}')
                else:
                    a(f'v_subrev_u32 v{VB2[T]}, {-dlt}, v{VB2[T]}')
            cur_base[0] = base
        o = ad - base
        bb = BF + 8 * (t & 1)
        for T in range(2):
            a(f'ds_read_b64_tr_b16 {vr(bb + 4 * T, 2)}, v{VB2[T]} offset:{o}'); lg.push(('ba', t, T))
            a(f'ds_read_b64_tr_b16 {vr(bb + 4 * T + 2, 2)}, v{VB2[T]} offset:{o + 1024}'); lg.push(('b', t, T))

    breads(0)
    for t in range(30):
        special = t in (NPRE - 1, 21)
        if t + 1 < 30 and not special:
            breads(t + 1)
        vm.wait(('A', t))
        slot = t if t < 22 else t - 22
        for T in range(2):
            lg.wait(('b', t, T))
            acc = vr((AH if t < 22 else AO) + 16 * T, 16)
            a(f'v_mfma_f32_32x32x16_bf16 {acc}, {vr(BF + 8 * (t & 1) + 4 * T)}, {vr(AF + 4 * slot)}, {"0" if t in (0, 22) else acc}')
        if t == 30 - NPRE - 1:
            a('s_barrier')
            stamp(7) if False else None
            for u in range(NPRE, 30):
                a(f's_add_u32 m0, s72, {baddr(u)}')
                if u < 22:
                    a(f's_add_u32 s74, s73, {u * 65536}')
                    a(f'buffer_load_dwordx4 v{VBR}, {SW2}, s74 offen lds')
                else:
                    a(f's_add_u32 s74, s73, {(u - 22) * 65536}')
                    a(f'buffer_load_dwordx4 v{VBR}, {SWO}, s74 offen lds')
                vm.push(('D', u))
        if t == NPRE - 1:
            vm.wait(('D', 21))
            a('s_barrier')
            breads(t + 1)
        if t == 21:
            stamp(7)
            poll(f'v{VFL}', 's71')
            vm.reset()
            stamp(8)
            for u in range(22, 30):
                aload(u, u - 22)
                if u == 25:
                    a('s_add_u32 s70, s70, 4096')
            a('s_barrier')
            breads(t + 1)
    stamp(9)
    a(f'''
    v_sub_f32 v{VOMG}, 1.0, v{VG}
    v_and_b32 v100, 31, {vLANE}
    v_lshrrev_b32 v101, 5, {vLANE}
    v_and_b32 v102, 7, {vLANE}
    v_xor_b32 v101, v101, v102
    v_lshlrev_b32 v100, 8, v100
    v_lshl_add_u32 v100, v101, 4, v100
    s_lshl_b32 s64, s68, 14
    s_lshl_b32 s65, s69, 13
    s_add_u32 s64, s64, s65
    s_add_u32 s64, s64, {RED}
    v_add_u32 v100, s64, v100
    v_xor_b32 v101, 32, v100
    v_xor_b32 v102, 64, v100
    v_xor_b32 v103, 96, v100
    v_lshrrev_b32 v104, 3, {vLANE}
    v_and_b32 v105, 7, {vLANE}
    v_lshlrev_b32 v106, 1, v105
    v_xor_b32 v106, v106, v104
    v_lshlrev_b32 v107, 8, v104
    v_lshl_add_u32 v106, v106, 4, v107
    s_lshl_b32 s64, {sWAVE}, 11
    s_add_u32 s64, s64, {RED}
    v_add_u32 v106, s64, v106
    v_xor_b32 v107, 16, v106
    v_lshlrev_b32 v104, 10, v104
    v_lshl_add_u32 v104, v105, 4, v104
    s_lshl_b32 s64, {sR2}, 16
    s_lshl_b32 s65, {sWAVE}, 13
    s_add_u32 s64, s64, s65
    s_add_u32 s64, s64, s73
    ''')
    assert RED % 256 == 0
    for T in range(2):
        for q in range(4):
            for p in range(2):
                o = 16 * T + 4 * q + 2 * p
                a(f'v_pk_mul_f32 {vr(AO + o, 2)}, {vr(AO + o, 2)}, {vr(VG, 2)} op_sel_hi:[1,0]')
            for p in range(2):
                o = 16 * T + 4 * q + 2 * p
                a(f'v_pk_fma_f32 {vr(AH + o, 2)}, {vr(AH + o, 2)}, {vr(VOMG, 2)}, {vr(AO + o, 2)} op_sel_hi:[1,0,1]')
            a(f'ds_write_b128 v{100 + q}, {vr(AH + 16 * T + 4 * q)} offset:{128 * T}')
    a('s_waitcnt lgkmcnt(0)\ns_barrier')
    for k in range(4):
        a(f'ds_read_b128 {vr(64 + 8 * k)}, v106 offset:{16384 * k}')
        a(f'ds_read_b128 {vr(68 + 8 * k)}, v107 offset:{16384 * k}')
    a('s_waitcnt lgkmcnt(4)')
    for p in range(4):
        a(f'v_pk_add_f32 {vr(64 + 2 * p, 2)}, {vr(64 + 2 * p, 2)}, {vr(72 + 2 * p, 2)}')
    a('s_waitcnt lgkmcnt(0)')
    for p in range(4):
        a(f'v_pk_add_f32 {vr(80 + 2 * p, 2)}, {vr(80 + 2 * p, 2)}, {vr(88 + 2 * p, 2)}')
    for p in range(4):
        a(f'v_pk_add_f32 {vr(64 + 2 * p, 2)}, {vr(64 + 2 * p, 2)}, {vr(80 + 2 * p, 2)}')
    for p in range(4):
        a(f'v_cvt_pk_bf16_f32 v{96 + p}, v{64 + 2 * p}, v{64 + 2 * p + 1}')
    a(f'buffer_store_dwordx4 v[96:99], v104, {SOUT}, s64 offen')
    if profile:
        a('s_waitcnt vmcnt(0)')
        stamp(10)
        a(f'''
        s_lshl_b32 s64, s2, 3
        s_add_u32 s64, s64, {sWAVE}
        s_lshl_b32 s64, s64, 6
        s_add_u32 s64, s64, {WS_PROF}
        v_mov_b32 v1, 0
        s_mov_b64 exec, 1
        ''')
        for i in range(16):
            a(f'v_mov_b32 v2, s{80 + i}\nbuffer_store_dword v2, v1, {SWS}, s64 offen offset:{4 * i}')
    a('L_end:\ns_endpgm')

    body = a.text()
    errs = hazard.check(body)
    for e in errs:
        print('HAZARD', e, file=sys.stderr)
    head = open('cdna_kernels/' + NAME + '.s.ref').read().split('; Override')[0]
    head += '; @launch grid=(256,1,1) block=(512,1,1) lds=163840\n.amdgcn_target "amdgcn-amd-amdhsa--gfx950"\n'
    return head + kernel_head(K) + body + kernel_desc(K, 256, 256, 100), errs


if __name__ == '__main__':
    prof = 'prof' in sys.argv[1:]
    out = sys.argv[1] if len(sys.argv) > 1 else 'k.s'
    txt, errs = gen(prof)
    open(out, 'w').write(txt)
    print(out, len(txt), 'bytes', len(errs), 'hazards')
```

```python
import sys
from asmlib import *
import hazard

WS_EPOCH = 0
WS_FH = 0x1000
WS_FP = 0x6000
WS_FO = 0x8000
WS_G = 0x10000
WS_PART = 0x20000
WS_A = 0x100000
AREG = 35840
WS_PROF = 0xA00000
WS_SIZE = 0xB00000

SLOT = 40960
MISC = 147456
RED = 98304
NPRE = 18
NPULL = 12

SX, SW, SW2, SWO, SWS, SOUT, SMISC, SWB = 's[4:7]', 's[8:11]', 's[12:15]', 's[16:19]', 's[20:23]', 's[24:27]', 's[28:31]', 's[96:99]'
sWAVE, sR, sTYPE, sC, sR2, sC2, sTAG, sBOUND = 's56', 's57', 's58', 's59', 's60', 's61', 's62', 's63'
sKO = 's3'
vLANE = 'v254'


class Q:
    def __init__(self, a, name, mx):
        self.a, self.name, self.mx = a, name, mx
        self.q = []
    def push(self, tag):
        self.q.append(tag)
        assert len(self.q) <= self.mx, (self.name, len(self.q))
    def wait(self, *tags):
        idx = max([self.q.index(t) for t in tags if t in self.q], default=-1)
        if idx < 0:
            return
        n = len(self.q) - 1 - idx
        self.a(f's_waitcnt {self.name}({n})')
        self.q = self.q[idx + 1:]
    def drain(self):
        self.a(f's_waitcnt {self.name}(0)')
        self.q = []
    def reset(self):
        self.q = []


def vr(b, n=4):
    return f'v[{b}:{b + n - 1}]'


def gen(profile=False, opts=()):
    a = Asm()
    K = NAME + '_kernel'

    def opt(name, dflt):
        for o in opts:
            if o.startswith(name + '='):
                return int(o.split('=')[1], 0)
        return dflt

    diag = 'diag' in opts
    stamp_on = [True]

    def stamp(i):
        if profile and stamp_on[0]:
            a(f'{"s_memtime" if "cyc" in opts else "s_memrealtime"} s[34:35]\ns_waitcnt lgkmcnt(0)\ns_mov_b32 s{80 + i}, s34')

    def srd(name, lo, size):
        b = int(name[2:name.index(':')])
        a(f's_mov_b32 s{b}, s{lo}\ns_mov_b32 s{b + 1}, s{lo + 1}\ns_mov_b32 s{b + 2}, {size}\ns_mov_b32 s{b + 3}, 0x20000')

    def poll(vaddr, soff, vtmp='v255'):
        l0, l1 = a.label('L_poll'), a.label('L_polled')
        a(f'''
        {l0}:
        buffer_load_dword {vtmp}, {vaddr}, {SWS}, {soff} offen sc1
        s_waitcnt vmcnt(0)
        v_cmp_ne_u32 vcc, {sTAG}, {vtmp}
        s_cbranch_vccz {l1}
        s_sub_u32 {sBOUND}, {sBOUND}, 1
        s_cbranch_scc1 {l1}
        s_sleep {opt('SLP', 1)}
        s_branch {l0}
        {l1}:
        ''')

    def flag(soff, vz='v253', vt='v255'):
        a(f'''
        v_mov_b32 {vz}, 0
        v_mov_b32 {vt}, {sTAG}
        s_mov_b64 exec, 1
        buffer_store_dword {vt}, {vz}, {SWS}, {soff} offen sc1
        s_mov_b64 exec, -1
        ''')

    def rest_srds():
        srd(SW2, 46, 1409024)
        srd(SWO, 40, 524288)
        srd(SWS, 54, WS_SIZE)
        srd(SOUT, 50, 2097152)

    def make_tag():
        a(f's_mul_i32 {sTAG}, {sTAG}, 0x9E3779B1\ns_add_u32 {sTAG}, {sTAG}, 0x7F4A7C15\ns_mov_b32 {sBOUND}, 0x80000')

    def afrag_voff(dst, sround, t0, t1):
        if isinstance(sround, int):
            a(f'v_lshrrev_b32 {t0}, 3, {vLANE}\nv_add_u32 {t0}, {8 * sround}, {t0}')
        else:
            a(f'v_lshrrev_b32 {t0}, 3, {vLANE}\nv_lshl_add_u32 {t0}, {sround}, 3, {t0}')
        a(f'''
        v_add_u32 {t1}, 4, {t0}
        v_mul_u32_u24 {t1}, 9363, {t1}
        v_lshrrev_b32 {t1}, 16, {t1}
        v_add_u32 {t0}, {t0}, {t1}
        v_and_b32 {t1}, 7, {vLANE}
        v_lshlrev_b32 {t1}, 4, {t1}
        v_lshl_add_u32 {dst}, {t0}, 7, {t1}
        ''')

    AH, AO, AF, BF, PB = 0, 32, 64, 104, 120
    NSL = 10
    VB2 = [216, 217]
    VFL, VBR, VG, VOMG = 218, 220, 222, 224
    VA = 226
    T = 240

    def b2_addr():
        a(f'''
        v_lshrrev_b32 v250, 5, {vLANE}
        v_bfe_u32 v251, {vLANE}, 2, 2
        v_lshl_add_u32 v250, v250, 2, v251
        v_lshlrev_b32 v250, 7, v250
        v_lshrrev_b32 v251, 1, v251
        v_lshl_add_u32 v250, v251, 6, v250
        v_bfe_u32 v251, {vLANE}, 4, 1
        v_lshl_add_u32 v250, v251, 5, v250
        v_and_b32 v251, 3, {vLANE}
        v_lshl_add_u32 v250, v251, 3, v250
        s_and_b32 s35, {sWAVE}, 3
        s_lshl_b32 s35, s35, 11
        v_add_u32 v{VB2[0]}, s35, v250
        v_xor_b32 v{VB2[1]}, 64, v{VB2[0]}
        ''')

    def pulls():
        n = 0
        for t in range(NPULL):
            if t == 8:
                a(f'v_add_u32 v{VB2[0]}, 0x10000, v{VB2[0]}\nv_add_u32 v{VB2[1]}, 0x10000, v{VB2[1]}')
            for TT in range(2):
                for h in range(2):
                    a(f'ds_read_b64_tr_b16 {vr(PB + 8 * t + 4 * TT + 2 * h, 2)}, v{VB2[TT]} offset:{(t & 7) * 8192 + 1024 * h}')
                    n += 1
                    if n >= 8 and n % 4 == 0:
                        a('s_waitcnt lgkmcnt(8)')
        a('s_waitcnt lgkmcnt(0)')

    def reload_setup():
        a(f'''
        v_lshrrev_b32 v250, 3, {vLANE}
        v_and_b32 v251, 7, {vLANE}
        v_bfe_u32 v252, {vLANE}, 4, 1
        v_lshlrev_b32 v252, 2, v252
        v_xor_b32 v251, v251, v252
        v_lshlrev_b32 v251, 4, v251
        s_and_b32 s35, {sWAVE}, 3
        s_lshl_b32 s34, s35, 4
        v_add_u32 v250, s34, v250
        v_lshl_add_u32 v{VBR}, v250, 10, v251
        v_add_u32 v{VBR + 1}, 7168, v{VBR}
        s_lshl_b32 s65, s35, 11
        s_lshl_b32 s66, {sC2}, 7
        ''')

    def bround_ops(t, lds):
        srdn, row = (SW2, t) if t < 22 else (SWO, t - 22)
        return [f's_add_u32 m0, s65, {lds}\ns_add_u32 s64, s66, {row * 65536}\nbuffer_load_dwordx4 v{VBR}, {srdn}, s64 offen lds',
                f'buffer_load_dwordx4 v{VBR + 1}, {srdn}, s64 offen offset:1024 lds']

    def reload():
        WR = opt('WR', 8)
        n = 0
        for t in range(NPRE, 30):
            for op in bround_ops(t, (t - NPRE) * 8192):
                if n >= WR:
                    a(f's_waitcnt vmcnt({WR - 1})')
                a(op)
                n += 1

    a(f'''
    s_cmp_ge_u32 s2, 256
    s_cbranch_scc1 L_end
    s_load_dwordx16 s[36:51], s[0:1], 0
    s_load_dwordx4 s[52:55], s[0:1], 64
    v_lshrrev_b32 v1, 6, v0
    v_and_b32 {vLANE}, 63, v0
    s_and_b32 s64, s2, 7
    v_readfirstlane_b32 {sWAVE}, v1
    s_lshr_b32 s65, s2, 3
    s_and_b32 s66, s65, 3
    s_lshr_b32 {sR}, s64, 1
    s_lshl_b32 {sR}, {sR}, 2
    s_add_u32 {sR}, {sR}, s66
    s_lshl_b32 {sR2}, s64, 2
    s_add_u32 {sR2}, {sR2}, s66
    ''')
    if opt('map', 1) == 0:
        a(f'''
        s_bfe_u32 {sTYPE}, s65, 0x10002
        s_and_b32 {sC}, s64, 1
        s_lshl_b32 {sC}, {sC}, 2
        s_lshr_b32 s67, s65, 3
        s_add_u32 {sC}, {sC}, s67
        s_lshr_b32 {sC2}, s65, 2
        ''')
    else:
        a(f'''
        s_and_b32 {sTYPE}, s64, 1
        s_lshr_b32 {sC}, s65, 2
        s_xor_b32 {sC2}, {sC}, 4
        ''')
    a(f's_lshl_b32 s66, s66, 2\ns_lshr_b32 {sKO}, {opt("KO", 0x1010)}, s66\ns_and_b32 {sKO}, {sKO}, 7')
    if profile:
        for i in range(16):
            a(f's_mov_b32 s{80 + i}, 0')
        a('s_memrealtime s[34:35]\ns_waitcnt lgkmcnt(0)\ns_mov_b32 s95, s34')
    a(f'''
    s_cmp_lt_u32 {sWAVE}, 4
    s_cbranch_scc1 L_compute
    ''')

    VX = [200, 201, 202, 203]
    VW = [204, 205]
    VGATE = 180
    VGA = 188
    a(f'''
    s_sub_u32 s68, {sWAVE}, 4
    s_cmp_eq_u32 {sTYPE}, 1
    s_movk_i32 s69, 3072
    s_cmov_b32 s69, 2752
    v_lshrrev_b32 v1, 3, {vLANE}
    v_and_b32 v2, 7, {vLANE}
    v_lshrrev_b32 v3, 4, {vLANE}
    v_xor_b32 v4, v2, v3
    v_lshlrev_b32 v5, 10, v1
    v_lshl_add_u32 v{VX[0]}, v4, 4, v5
    v_xor_b32 v6, 64, v{VX[0]}
    v_add_u32 v{VX[1]}, 7168, v6
    v_add_u32 v{VX[2]}, 14336, v{VX[0]}
    v_add_u32 v{VX[3]}, 21504, v6
    v_and_b32 v3, 1, v3
    v_lshlrev_b32 v3, 2, v3
    v_xor_b32 v4, v2, v3
    v_lshlrev_b32 v4, 4, v4
    s_lshl_b32 s64, s68, 4
    v_add_u32 v1, s64, v1
    v_mul_u32_u24 v6, s69, v1
    v_add_u32 v{VW[0]}, v6, v4
    s_lshl_b32 s64, s69, 3
    s_sub_u32 s64, s64, 1024
    v_add_u32 v{VW[1]}, s64, v{VW[0]}
    s_lshl_b32 s70, {sR}, 17
    s_lshl_b32 s64, s68, 15
    s_add_u32 s70, s70, s64
    s_lshl_b32 s74, s69, 6
    s_lshl_b32 s75, s68, 12
    s_lshl_b32 s76, s68, 11
    s_add_u32 s76, s76, 16384
    s_add_u32 s77, s76, 8192
    s_add_u32 s78, s76, 16384
    s_lshl_b32 s79, {sKO}, 7
    s_mul_i32 s67, {sKO}, s74
    s_lshl_b32 s66, s74, 3
    s_mov_b32 s33, 0
    s_mov_b32 s32, -1
    s_cmp_eq_u32 {sTYPE}, 1
    s_cbranch_scc1 L_h_ffn
    s_lshl_b32 s71, {sC}, 7
    s_add_u32 s72, s71, 1024
    s_add_u32 s73, s71, 2048
    s_branch L_h_go
    L_h_ffn:
    s_mul_i32 s71, {sC}, 384
    s_add_u32 s72, s71, 128
    s_add_u32 s73, s71, 256
    s_cmp_lg_u32 {sC}, 7
    s_cbranch_scc1 L_h_go
    s_mov_b32 s32, 0
    s_mov_b32 s77, s78
    s_cmp_eq_u32 s68, 0
    s_cselect_b32 s33, 1, 0
    L_h_go:
    s_waitcnt lgkmcnt(0)
    s_load_dword {sTAG}, s[54:55], {WS_EPOCH}
    ''')
    srd(SX, 36, 2097152)
    a(f'''
    s_cmp_eq_u32 {sTYPE}, 1
    s_cselect_b64 s[8:9], s[44:45], s[38:39]
    s_mov_b32 s10, 1572864
    s_cmov_b32 s10, 1409024
    s_mov_b32 s11, 0x20000
    s_mov_b64 s[96:97], s[8:9]
    s_and_b32 s98, s10, s32
    s_mov_b32 s99, 0x20000
    s_cmp_eq_u32 s33, 0
    s_cbranch_scc1 L_h_nogate0
    ''')
    srd(SMISC, 48, 1024)
    a(f'v_lshlrev_b32 v1, 1, {vLANE}')
    for j in range(8):
        a(f's_add_u32 s64, s79, {128 * j}\ns_and_b32 s64, s64, 1023')
        a(f'buffer_load_ushort v{VGATE + j}, v1, {SMISC}, s64 offen')
    a(f'''
    v_lshlrev_b32 v2, 5, {vLANE}
    v_and_b32 v2, 64, v2
    v_lshl_add_u32 v{VGA}, {vLANE}, 7, v2
    v_add_u32 v{VGA}, {16384 + 8192}, v{VGA}
    v_xor_b32 v{VGA + 1}, 64, v{VGA}
    v_add_u32 v{VGA + 2}, {2 * SLOT}, v{VGA}
    v_add_u32 v{VGA + 3}, {2 * SLOT}, v{VGA + 1}
    L_h_nogate0:
    ''')

    W1 = opt('W1', 10)
    ops = []
    for st in range(8):
        sl = (st & 3) * SLOT
        for j in range(4):
            pre = f's_add_u32 m0, s75, {sl}\ns_add_u32 s64, s70, s79\n' if j == 0 else ''
            post = '\ns_add_u32 s79, s79, 128\ns_and_b32 s79, s79, 1023' if j == 3 else ''
            ops.append(pre + f'buffer_load_dwordx4 v{VX[j]}, {SX}, s64 offen offset:{1024 * j} lds' + post)
        for b in range(3):
            sw = SW if b == 0 else SWB
            post = '\ns_add_u32 s67, s67, s74\ns_cmp_eq_u32 s67, s66\ns_cselect_b32 s67, 0, s67' if b == 2 else ''
            ops.append(f's_add_u32 m0, s{76 + b}, {sl}\ns_add_u32 s64, s{71 + b}, s67\nbuffer_load_dwordx4 v{VW[0]}, {sw}, s64 offen lds')
            ops.append(f'buffer_load_dwordx4 v{VW[1]}, {sw}, s64 offen offset:1024 lds' + post)
    for t in range(NPRE):
        ops += bround_ops(t, t * 8192)

    def gate_write(st):
        lab = a.label('L_h_nogate')
        a(f's_cmp_eq_u32 s33, 0\ns_cbranch_scc1 {lab}')
        sts = [st] if st >= 4 else [0, 1, 2, 3]
        for u in sts:
            o = (u & 1) * SLOT
            k = ((u >> 1) & 1) * 2
            a(f'ds_write_b16 v{VGA + k}, v{VGATE + u} offset:{o}')
            a(f'ds_write_b16 v{VGA + k + 1}, v{VGATE + u} offset:{o}')
        a(f'{lab}:')

    nbar = 0
    WB = opt('WB', 0)
    NB8 = opt('NB8', 89 + W1)
    NA = opt('NA', NB8 + 6)
    for n, op in enumerate(ops):
        need = (n // 10 - 3) if n < 80 else 5 + (n - 80) // 10
        assert need < nbar, (n, need, nbar)
        if n == 80:
            reload_setup()
        if n == NA:
            a(f's_cmp_eq_u32 {sTYPE}, 1\ns_cbranch_scc1 L_h_noA\ns_barrier\nL_h_noA:')
        if WB and n > NB8:
            a(f's_waitcnt vmcnt({WB - 1})')
        if ('noload' not in opts or n >= 80):
            a(op)
        if n == 9:
            rest_srds()
            if 'cpf' in opts:
                a(f'''
                s_cmp_lg_u32 s68, 3
                s_cbranch_scc1 L_h_nocpf
                s_getpc_b64 s[34:35]
                v_lshlrev_b32 v1, 7, {vLANE}
                global_load_dword v2, v1, s[34:35]
                v_add_u32 v1, 0x2000, v1
                global_load_dword v3, v1, s[34:35]
                L_h_nocpf:
                ''')
        if nbar < 8 and n == 10 * (nbar + 1) - 1 + W1:
            if nbar == 0:
                a(f's_waitcnt vmcnt({W1}) lgkmcnt(0)')
                gate_write(0)
                make_tag()
            a(f's_waitcnt vmcnt({W1}) lgkmcnt(0)')
            if diag or nbar == 0:
                stamp(nbar)
            a('s_barrier')
            if 1 <= nbar <= 4:
                gate_write(nbar + 3)
            nbar += 1
        elif nbar == 8 and n == NB8:
            a('s_barrier')
            if diag:
                stamp(8)
            nbar += 1
    assert nbar == 9 and NA > NB8
    b2_addr()
    if diag:
        a('s_waitcnt vmcnt(0)')
        stamp(9)
        stamp_on[0] = False
    stamp(1)
    a(f's_cmp_eq_u32 {sTYPE}, 0\ns_cbranch_scc1 L_h_attn')
    a('s_waitcnt vmcnt(0)\ns_barrier')
    pulls()
    a('s_barrier')
    stamp(2)
    reload()
    a('s_branch L_phase2')
    IDN, PQ, PP, KVF = 112, 96, 32, 16
    a(f'''
    L_h_attn:
    v_and_b32 v1, 31, {vLANE}
    v_lshrrev_b32 v2, 5, {vLANE}
    v_lshlrev_b32 v3, 2, v2
    v_sub_u32 v3, v1, v3
    v_subrev_u32 v4, 4, v3
    v_cmp_gt_u32 vcc, 8, v3
    s_nop 1
    v_cndmask_b32 v4, v4, v3, vcc
    v_and_b32 v5, 4, v3
    v_cmp_eq_u32 vcc, 0, v5
    v_cmp_gt_u32 s[64:65], 12, v3
    s_and_b64 vcc, vcc, s[64:65]
    v_mov_b32 v5, 64
    s_nop 0
    v_cndmask_b32 v4, v5, v4, vcc
    v_and_b32 v5, 1, v4
    v_lshlrev_b32 v5, 4, v5
    v_mov_b32 v6, 0x3f80
    v_lshlrev_b32 v5, v5, v6
    v_lshrrev_b32 v4, 1, v4
    ''')
    for p in range(4):
        a(f'v_cmp_eq_u32 vcc, {p}, v4\ns_nop 1\nv_cndmask_b32 v{IDN + p}, 0, v5, vcc')
    a(f'''
    v_min_u32 v3, 16, v1
    v_lshl_add_u32 v3, v2, 5, v3
    v_lshlrev_b32 v116, 4, v3
    v_min_u32 v117, 15, {vLANE}
    v_lshlrev_b32 v117, 2, v117
    v_lshlrev_b32 v118, 4, {vLANE}
    s_lshr_b32 s64, s68, 1
    s_lshl_b32 s64, s64, 12
    s_and_b32 s65, s68, 1
    s_lshl_b32 s65, s65, 10
    s_add_u32 s64, s64, s65
    s_add_u32 s64, s64, {MISC}
    v_add_u32 v118, s64, v118
    s_add_u32 s64, {sC}, 22
    ''')
    afrag_voff('v119', 's64', 'v3', 'v4')
    a(f'''
    s_lshl_b32 s66, {sC}, 2
    s_add_u32 s66, s66, s68
    s_lshl_b32 s67, s66, 8
    s_add_u32 s67, s67, {WS_FP}
    s_lshl_b32 s66, s66, 14
    s_add_u32 s66, s66, {WS_PART}
    s_waitcnt vmcnt(0)
    s_barrier
    ''')
    for tl in range(4):
        a(f'ds_read_b128 {vr(PQ + 4 * tl)}, v118 offset:{(tl >> 1) * 8192 + (tl & 1) * 2048}')
    pulls()
    a('s_barrier')
    stamp(2)
    poll('v117', 's67')
    stamp(3)
    vm = Q(a, 'vmcnt', 63)
    for r in range(16):
        a(f'buffer_load_dwordx4 {vr(PP + 4 * r)}, v116, {SWS}, s66 offen offset:{(r & 3) * 1024} sc1')
        vm.push(r)
        if r & 3 == 3 and r < 15:
            a('s_add_u32 s66, s66, 4096')
    a(f'''
    s_lshl_b32 s64, {sR}, 4
    s_add_u32 s64, s64, s68
    s_mul_i32 s64, s64, {AREG}
    s_add_u32 s64, s64, {WS_A}
    s_lshl_b32 s65, {sR}, 2
    s_add_u32 s65, s65, s68
    s_lshl_b32 s65, s65, 8
    s_lshl_b32 s67, {sC}, 2
    s_add_u32 s65, s65, s67
    s_add_u32 s65, s65, {WS_FO}
    s_mov_b32 s67, 0x358637bd
    ''')
    for r in range(16):
        vm.wait(r)
        a(f'v_mfma_f32_32x32x16_bf16 v[0:15], {vr(IDN)}, {vr(PP + 4 * r)}, {"0" if r == 0 else "v[0:15]"}')
    a('s_nop 11')
    for p in range(4):
        a(f'v_cvt_pk_bf16_f32 v{KVF + p}, v{2 * p}, v{2 * p + 1}')
    a('s_nop 1')
    for tl in range(4):
        a(f'v_mfma_f32_32x32x16_bf16 {vr(32 + 16 * tl, 16)}, {vr(KVF)}, {vr(PQ + 4 * tl)}, 0')
    a('s_nop 8')
    for tl in range(4):
        d = 32 + 16 * tl
        a(f'v_add_f32 v{d + 8}, s67, v{d + 8}\nv_rcp_f32 v{d + 8}, v{d + 8}\ns_nop 0')
        for p in range(4):
            a(f'v_pk_mul_f32 {vr(d + 2 * p, 2)}, {vr(d + 2 * p, 2)}, {vr(d + 8, 2)} op_sel_hi:[1,0]')
        for p in range(4):
            a(f'v_cvt_pk_bf16_f32 v{d + 12 + p}, v{d + 2 * p}, v{d + 2 * p + 1}')
        a(f'buffer_store_dwordx4 {vr(d + 12)}, v119, {SWS}, s64 offen sc1')
        a(f's_add_u32 s64, s64, {4 * AREG}')
    a('s_waitcnt vmcnt(0)')
    flag('s65')
    stamp(4)
    a('s_branch L_phase2')

    FX = [[96, 100], [104, 108]]
    FW = [[112, 116, 120], [124, 128, 132]]
    VXA = [[136, 137, 138, 139], [140, 141, 142, 143]]
    VWA = [144, 145]
    a(f'''
    L_compute:
    s_lshr_b32 s68, {sWAVE}, 1
    s_and_b32 s69, {sWAVE}, 1
    v_and_b32 v1, 31, {vLANE}
    v_lshrrev_b32 v2, 5, {vLANE}
    v_bfe_u32 v3, {vLANE}, 1, 3
    v_xor_b32 v3, v2, v3
    s_lshl_b32 s64, s68, 6
    v_add_u32 v1, s64, v1
    v_lshlrev_b32 v1, 7, v1
    v_lshl_add_u32 v{VXA[0][0]}, v3, 4, v1
    ''')
    for ks in range(1, 4):
        a(f'v_xor_b32 v{VXA[0][ks]}, {32 * ks}, v{VXA[0][0]}')
    for ks in range(4):
        a(f'v_add_u32 v{VXA[1][ks]}, {2 * SLOT}, v{VXA[0][ks]}')
    a(f'''
    v_bfe_u32 v3, {vLANE}, 2, 2
    v_lshl_add_u32 v4, v2, 3, v3
    v_lshlrev_b32 v4, 7, v4
    v_lshrrev_b32 v3, 1, v3
    v_xor_b32 v3, s69, v3
    v_lshl_add_u32 v4, v3, 6, v4
    v_bfe_u32 v3, {vLANE}, 4, 1
    v_lshl_add_u32 v4, v3, 5, v4
    v_and_b32 v3, 3, {vLANE}
    v_lshl_add_u32 v4, v3, 3, v4
    v_add_u32 v{VWA[0]}, 16384, v4
    v_add_u32 v{VWA[1]}, {16384 + 2 * SLOT}, v4
    s_waitcnt lgkmcnt(0)
    s_load_dword {sTAG}, s[54:55], {WS_EPOCH}
    ''')
    rest_srds()
    b2_addr()
    VE0, VE1, VE2 = 233, 234, 235
    a(f's_cmp_eq_u32 {sTYPE}, 1\ns_cbranch_scc1 L_c_setf')
    reload_setup()
    a(f'''
    s_mov_b32 s70, 0x3fb8aa3b
    s_mov_b32 s72, 0x358637bd
    s_mov_b32 s74, 0x0000ffff
    s_mov_b32 s75, 0x0000ffff
    s_lshl_b32 s64, s68, 4
    v_xor_b32 v{VE0}, s64, {vLANE}
    v_lshlrev_b32 v{VE0}, 4, v{VE0}
    v_lshlrev_b32 v{VE1}, 4, {vLANE}
    s_lshl_b32 s64, {sWAVE}, 12
    s_add_u32 s64, s64, {MISC}
    v_add_u32 v{VE1}, s64, v{VE1}
    v_xor_b32 v{VE2}, 8192, v{VE1}
    s_lshl_b32 s76, {sC}, 2
    s_lshl_b32 s77, s69, 1
    s_add_u32 s76, s76, s77
    s_add_u32 s76, s76, s68
    s_lshl_b32 s77, s76, 8
    s_lshl_b32 s78, {sR}, 2
    s_add_u32 s77, s77, s78
    s_add_u32 s77, s77, {WS_FP}
    s_lshl_b32 s76, s76, 4
    s_add_u32 s76, s76, {sR}
    s_lshl_b32 s76, s76, 10
    s_add_u32 s76, s76, {WS_PART}
    s_cmp_eq_u32 s68, 0
    s_mov_b32 s78, 0xffff0001
    s_cmov_b32 s78, 0x1ffff
    s_mov_b32 s79, s78
    s_branch L_c_set1
    L_c_setf:
    s_mov_b32 s70, 0xbfb8aa3b
    s_lshl_b32 s64, {sR}, 2
    s_lshl_b32 s65, s68, 1
    s_add_u32 s64, s64, s65
    s_lshl_b32 s66, s64, 8
    s_lshl_b32 s64, s64, 2
    s_lshl_b32 s65, s69, 1
    s_add_u32 s64, s64, s65
    s_mul_i32 s64, s64, {AREG}
    s_add_u32 s72, s64, {WS_A}
    s_add_u32 s73, s72, {AREG}
    s_add_u32 s74, s72, {4 * AREG}
    s_add_u32 s75, s73, {4 * AREG}
    s_lshl_b32 s76, s69, 14
    s_add_u32 s76, s76, s66
    s_add_u32 s76, s76, {WS_G}
    s_lshl_b32 s77, {sR}, 1
    s_add_u32 s77, s77, s68
    s_lshl_b32 s77, s77, 1
    s_add_u32 s77, s77, s69
    s_lshl_b32 s77, s77, 8
    s_lshl_b32 s66, {sC}, 2
    s_add_u32 s77, s77, s66
    s_add_u32 s77, s77, {WS_FH}
    s_mul_i32 s64, {sC}, 3
    ''')
    for b in range(3):
        afrag_voff(f'v{VE0 + b}', 's64', 'v1', 'v2')
        a('s_add_u32 s64, s64, 1')
    a('L_c_set1:')
    for i in range(96):
        a(f'v_mov_b32 v{i}, 0')
    a('s_waitcnt lgkmcnt(0)')
    make_tag()
    stamp(0)
    a('s_barrier')

    def reads(stage, ks, buf):
        st, par = (stage >> 1) & 1, stage & 1
        xo = par * SLOT
        wo = par * SLOT + ks * 2048
        r = []
        r.append((f'ds_read_b128 {vr(FX[buf][0])}, v{VXA[st][ks]} offset:{xo}', ('x', buf, 0)))
        r.append((f'ds_read_b64_tr_b16 {vr(FW[buf][0], 2)}, v{VWA[st]} offset:{wo}', ('wa', buf, 0)))
        r.append((f'ds_read_b64_tr_b16 {vr(FW[buf][0] + 2, 2)}, v{VWA[st]} offset:{wo + 512}', ('w', buf, 0)))
        r.append((f'ds_read_b128 {vr(FX[buf][1])}, v{VXA[st][ks]} offset:{xo + 4096}', ('x', buf, 1)))
        for b in (1, 2):
            r.append((f'ds_read_b64_tr_b16 {vr(FW[buf][b], 2)}, v{VWA[st]} offset:{wo + b * 8192}', ('wa', buf, b)))
            r.append((f'ds_read_b64_tr_b16 {vr(FW[buf][b] + 2, 2)}, v{VWA[st]} offset:{wo + b * 8192 + 512}', ('w', buf, b)))
        return r

    def mainloop(attn, lab):
        if 'nomfma' in opts:
            a('s_barrier\n' * 8)
            return
        lg = Q(a, 'lgkmcnt', 15)
        for ins, tag in reads(0, 0, 0):
            a(ins); lg.push(tag)
        a(f's_mov_b32 s64, 2\n{lab}:')
        for stage in range(4):
            for ks in range(4):
                buf = ks & 1
                nxt = reads(stage, ks + 1, buf ^ 1) if ks < 3 else reads((stage + 1) & 3, 0, buf ^ 1)
                order = [(0, 0), (0, 1), (1, 0), (1, 1), (2, 0), (2, 1)]
                start = 0 if ks < 3 else 2
                for i, (b, m) in enumerate(order):
                    lg.wait(('x', buf, m), ('w', buf, b))
                    acc = vr(16 * (2 * b + m), 16)
                    x, w = vr(FX[buf][m]), vr(FW[buf][b])
                    if attn and b > 0:
                        a(f'v_mfma_f32_32x32x16_bf16 {acc}, {x}, {w}, {acc}')
                    else:
                        a(f'v_mfma_f32_32x32x16_bf16 {acc}, {w}, {x}, {acc}')
                    if ks == 3 and i == 1:
                        lg.drain()
                        a('s_barrier')
                    if start <= i + (1 if ks == 3 else 0) and nxt:
                        n = 2 if ks < 3 else (3 if i < 3 else 2)
                        for ins, tag in nxt[:n]:
                            a(ins); lg.push(tag)
                        nxt = nxt[n:]
                assert not nxt
        a(f's_sub_u32 s64, s64, 1\ns_cmp_lg_u32 s64, 0\ns_cbranch_scc1 {lab}')
        a('s_waitcnt lgkmcnt(0)\ns_nop 7')

    a(f's_cmp_eq_u32 {sTYPE}, 1\ns_cbranch_scc1 L_c_ffn')
    mainloop(True, 'L_ml_attn')
    stamp(1)
    PK, VF, ONE, KV, ZZ = 96, 112, 128, 160, 176
    for p in range(4):
        a(f'v_mov_b32 v{ONE + p}, 0x3f803f80')
    assert (MISC >> 13) & 1 == 0

    def phi8(src, dst):
        for p in range(4):
            a(f'v_pk_mul_f32 {vr(T + 2 * p, 2)}, {vr(src + 2 * p, 2)}, s[70:71] op_sel_hi:[1,0]')
        for i in range(8):
            a(f'v_exp_f32 v{T + i}, v{T + i} clamp')
        for i in range(8):
            a(f'v_max_f32 v{src + i}, s72, v{src + i}')
        for p in range(4):
            a(f'v_pk_add_f32 {vr(T + 2 * p, 2)}, {vr(T + 2 * p, 2)}, {vr(src + 2 * p, 2)}')
        for p in range(4):
            a(f'v_cvt_pk_bf16_f32 v{dst + p}, v{T + 2 * p}, v{T + 2 * p + 1}')

    for g in range(4):
        phi8(32 + 8 * g, PK + 4 * g)
        for p in range(4):
            a(f'v_cvt_pk_bf16_f32 v{VF + 4 * g + p}, v{64 + 8 * g + 2 * p}, v{64 + 8 * g + 2 * p + 1}')
        a('s_nop 1')
        a(f'v_mfma_f32_32x32x16_bf16 {vr(KV, 16)}, {vr(PK + 4 * g)}, {vr(VF + 4 * g)}, {"0" if g == 0 else vr(KV, 16)}')
        a(f'v_mfma_f32_32x32x16_bf16 {vr(ZZ, 16)}, {vr(PK + 4 * g)}, {vr(ONE)}, {"0" if g == 0 else vr(ZZ, 16)}')
    PQW = 192
    phi8(0, PQW)
    for j in range(8):
        a(f'v_cndmask_b32 v{KV + j}, v{ZZ + j}, v{KV + j}, s[74:75]')
    for j in range(8, 16):
        a(f'v_cndmask_b32 v{KV + j}, v{KV + j}, v{ZZ + j}, s[74:75]')
    a(f'''
    s_cmp_eq_u32 s68, 0
    s_cbranch_scc1 L_a_wr0
    ds_write_b128 v{VE2}, {vr(KV)}
    ds_write_b128 v{VE2}, {vr(KV + 4)} offset:1024
    ''')
    for j in range(8):
        a(f'v_mov_b32 v{KV + j}, v{KV + 8 + j}')
    a(f'''
    s_branch L_a_wr1
    L_a_wr0:
    ds_write_b128 v{VE2}, {vr(KV + 8)}
    ds_write_b128 v{VE2}, {vr(KV + 12)} offset:1024
    L_a_wr1:
    s_waitcnt lgkmcnt(0)
    s_barrier
    ds_read_b128 {vr(ZZ)}, v{VE1}
    ds_read_b128 {vr(ZZ + 4)}, v{VE1} offset:1024
    s_waitcnt lgkmcnt(0)
    ''')
    for p in range(4):
        a(f'v_pk_add_f32 {vr(KV + 2 * p, 2)}, {vr(KV + 2 * p, 2)}, {vr(ZZ + 2 * p, 2)}')
    for p in range(4):
        a(f'v_cvt_pk_bf16_f32 v{KV + 8 + p}, v{KV + 2 * p}, v{KV + 2 * p + 1}')
    a(f's_mov_b64 exec, s[78:79]\nbuffer_store_dwordx4 {vr(KV + 8)}, v{VE0}, {SWS}, s76 offen sc1\ns_mov_b64 exec, -1')
    stamp(4)
    for g in range(1, 4):
        phi8(8 * g, PQW + 4 * g)
    for g in range(4):
        a(f'ds_write_b128 v{VE1}, {vr(PQW + 4 * g)} offset:{1024 * g}')
    stamp(3)
    a('s_waitcnt vmcnt(0)')
    flag('s77')
    stamp(2)
    a('s_waitcnt lgkmcnt(0)\ns_barrier')
    pulls()
    a('s_barrier')
    reload()
    a('s_branch L_phase2')

    a('L_c_ffn:')
    mainloop(False, 'L_ml_ffn')
    stamp(1)

    def silu8(src, dst):
        for p in range(4):
            a(f'v_pk_mul_f32 {vr(T + 2 * p, 2)}, {vr(src + 2 * p, 2)}, s[70:71] op_sel_hi:[1,0]')
        for i in range(8):
            a(f'v_exp_f32 v{T + i}, v{T + i}')
        for p in range(4):
            a(f'v_pk_add_f32 {vr(T + 2 * p, 2)}, {vr(T + 2 * p, 2)}, 1.0 op_sel_hi:[1,0]')
        for i in range(8):
            a(f'v_rcp_f32 v{T + i}, v{T + i}')
        for p in range(4):
            a(f'v_pk_mul_f32 {vr(T + 2 * p, 2)}, {vr(T + 2 * p, 2)}, {vr(src + 2 * p, 2)}')
        for p in range(4):
            a(f'v_cvt_pk_bf16_f32 v{dst + p}, v{T + 2 * p}, v{T + 2 * p + 1}')

    n = 0
    for b in range(3):
        for m in range(2):
            for f in range(2):
                dst = 96 + 4 * (n % 6); n += 1
                silu8(16 * (2 * b + m) + 8 * f, dst)
                a(f'buffer_store_dwordx4 {vr(dst)}, v{VE0 + b}, {SWS}, s{72 + 2 * m + f} offen sc1')
        if b == 0:
            a(f's_cmp_eq_u32 {sC}, 7\ns_cbranch_scc1 L_f_gate')
    a('s_branch L_f_flag')
    a(f'''
    L_f_gate:
    v_mul_f32 v{T}, s70, v32
    v_mul_f32 v{T + 1}, s70, v48
    v_exp_f32 v{T}, v{T}
    v_exp_f32 v{T + 1}, v{T + 1}
    v_lshlrev_b32 v{T + 2}, 2, {vLANE}
    v_add_f32 v{T}, 1.0, v{T}
    v_add_f32 v{T + 1}, 1.0, v{T + 1}
    v_rcp_f32 v{T}, v{T}
    v_rcp_f32 v{T + 1}, v{T + 1}
    s_mov_b32 exec_hi, 0
    buffer_store_dword v{T}, v{T + 2}, {SWS}, s76 offen sc1
    buffer_store_dword v{T + 1}, v{T + 2}, {SWS}, s76 offen offset:256 sc1
    s_mov_b64 exec, -1
    L_f_flag:
    ''')
    stamp(3)
    if 'flaglate' not in opts:
        a('s_waitcnt vmcnt(0)')
        flag('s77')
        stamp(2)
    a('s_barrier')
    pulls()
    a('s_barrier')
    if 'flaglate' in opts:
        a('s_waitcnt vmcnt(0)')
        flag('s77')
        stamp(2)

    a(f'''
    L_phase2:
    s_and_b32 s68, {sWAVE}, 3
    s_lshr_b32 s69, {sWAVE}, 2
    v_min_u32 v{VFL}, 7, {vLANE}
    v_lshlrev_b32 v{VFL}, 2, v{VFL}
    v_and_b32 v5, 31, {vLANE}
    v_lshlrev_b32 v5, 2, v5
    s_lshl_b32 s64, {sR2}, 1
    s_add_u32 s64, s64, s69
    s_lshl_b32 s65, s64, 8
    s_lshl_b32 s64, s64, 2
    s_add_u32 s64, s64, s68
    s_mul_i32 s70, s64, {AREG}
    s_add_u32 s70, s70, {WS_A}
    s_lshr_b32 s66, s68, 1
    s_lshl_b32 s67, s66, 14
    s_add_u32 s65, s65, s67
    s_add_u32 s65, s65, {WS_G}
    s_lshl_b32 s64, {sR2}, 1
    s_add_u32 s64, s64, s66
    s_lshl_b32 s64, s64, 8
    s_add_u32 s64, s64, {WS_FH}
    s_lshr_b32 s71, {sR2}, 1
    s_lshl_b32 s71, s71, 2
    s_add_u32 s71, s71, s68
    s_lshl_b32 s71, s71, 8
    s_add_u32 s71, s71, {WS_FO}
    s_lshl_b32 s73, {sC2}, 7
    ''')
    for j in range(7):
        afrag_voff(f'v{VA + j}', j, 'v1', 'v2')
    stamp(5)
    poll(f'v{VFL}', 's64')
    stamp(6)
    vm = Q(a, 'vmcnt', 63)
    lg = Q(a, 'lgkmcnt', 15)
    a(f'buffer_load_dword v{VG}, v5, {SWS}, s65 offen sc1'); vm.push('g')
    W2 = opt('W2', 5)
    NQ = opt('NQ', 19)

    def aload(t):
        if t and t % 7 == 0:
            a('s_add_u32 s70, s70, 8192')
        a(f'buffer_load_dwordx4 {vr(AF + 4 * (t % NSL))}, v{VA + t % 7}, {SWS}, s70 offen sc1')
        vm.push(('A', t))

    stream = [('A', t) for t in range(22)]
    stream.insert(NQ, 'Q')
    state = dict(done=-1, q=False)

    def topup():
        while stream and len(vm.q) < W2:
            it = stream[0]
            if it != 'Q' and it[1] - state['done'] > NSL - 1:
                break
            stream.pop(0)
            if it == 'Q':
                a(f'buffer_load_dword v252, v{VFL}, {SWS}, s71 offen sc1')
                vm.push('Q')
            else:
                aload(it[1])

    def baddr(t):
        return t * 8192 if t < NPRE else (t - NPRE) * 8192

    cur_base = [0x10000]

    def breads(t):
        ad = baddr(t)
        base = ad & ~0xffff
        if base != cur_base[0]:
            dlt = base - cur_base[0]
            for TT in range(2):
                if dlt > 0:
                    a(f'v_add_u32 v{VB2[TT]}, {dlt}, v{VB2[TT]}')
                else:
                    a(f'v_subrev_u32 v{VB2[TT]}, {-dlt}, v{VB2[TT]}')
            cur_base[0] = base
        o = ad - base
        bb = BF + 8 * (t & 1)
        for TT in range(2):
            a(f'ds_read_b64_tr_b16 {vr(bb + 4 * TT, 2)}, v{VB2[TT]} offset:{o}'); lg.push(('ba', t, TT))
            a(f'ds_read_b64_tr_b16 {vr(bb + 4 * TT + 2, 2)}, v{VB2[TT]} offset:{o + 1024}'); lg.push(('b', t, TT))

    def checkq():
        if not state['q'] and 'Q' not in stream and 'Q' not in vm.q:
            state['q'] = True
            stamp(7)
            a(f'v_cmp_ne_u32 vcc, {sTAG}, v252\ns_cbranch_vccnz L_p2_spin\nL_p2_ook:')
            stamp(8)
            stream.extend([('A', u) for u in range(22, 30)])

    topup()
    for t in range(30):
        if t + 1 >= NPULL and t + 1 < 30 and t + 1 != NPRE:
            breads(t + 1)
        while ('A', t) not in vm.q:
            vm.wait(vm.q[0]); checkq(); topup()
        vm.wait(('A', t))
        checkq()
        topup()
        for TT in range(2):
            acc = vr((AH if t < 22 else AO) + 16 * TT, 16)
            if t < NPULL:
                bop = vr(PB + 8 * t + 4 * TT)
            else:
                lg.wait(('b', t, TT))
                bop = vr(BF + 8 * (t & 1) + 4 * TT)
            a(f'v_mfma_f32_32x32x16_bf16 {acc}, {bop}, {vr(AF + 4 * (t % NSL))}, {"0" if t in (0, 22) else acc}')
        state['done'] = t
        if t == NPRE - 1:
            a('s_barrier')
            breads(t + 1)
    assert not stream and state['q']
    stamp(9)
    a(f'''
    s_or_b32 s33, s2, {sWAVE}
    s_cbranch_scc1 L_fin0
    v_lshrrev_b32 v108, 3, {vLANE}
    v_and_b32 v109, 7, {vLANE}
    v_lshlrev_b32 v109, 2, v109
    v_lshl_add_u32 v108, v108, 10, v109
    s_mov_b32 s74, {WS_FH}
    s_mov_b32 s75, {WS_FH + 8192}
    buffer_load_dword v110, v108, {SWS}, s74 offen sc1
    buffer_load_dword v111, v108, {SWS}, s75 offen sc1
    L_fin0:
    v_sub_f32 v{VOMG}, 1.0, v{VG}
    v_and_b32 v100, 31, {vLANE}
    v_lshrrev_b32 v101, 5, {vLANE}
    v_and_b32 v102, 7, {vLANE}
    v_xor_b32 v101, v101, v102
    v_lshlrev_b32 v100, 8, v100
    v_lshl_add_u32 v100, v101, 4, v100
    s_lshl_b32 s64, s68, 14
    s_lshl_b32 s65, s69, 13
    s_add_u32 s64, s64, s65
    s_add_u32 s64, s64, {RED}
    v_add_u32 v100, s64, v100
    v_xor_b32 v101, 32, v100
    v_xor_b32 v102, 64, v100
    v_xor_b32 v103, 96, v100
    v_lshrrev_b32 v104, 3, {vLANE}
    v_and_b32 v105, 7, {vLANE}
    v_lshlrev_b32 v106, 1, v105
    v_xor_b32 v106, v106, v104
    v_lshlrev_b32 v107, 8, v104
    v_lshl_add_u32 v106, v106, 4, v107
    s_lshl_b32 s64, {sWAVE}, 11
    s_add_u32 s64, s64, {RED}
    v_add_u32 v106, s64, v106
    v_xor_b32 v107, 16, v106
    v_lshlrev_b32 v104, 10, v104
    v_lshl_add_u32 v104, v105, 4, v104
    s_lshl_b32 s64, {sR2}, 16
    s_lshl_b32 s65, {sWAVE}, 13
    s_add_u32 s64, s64, s65
    s_add_u32 s64, s64, s73
    ''')
    assert RED % 256 == 0
    for TT in range(2):
        for q in range(4):
            for p in range(2):
                o = 16 * TT + 4 * q + 2 * p
                a(f'v_pk_mul_f32 {vr(AO + o, 2)}, {vr(AO + o, 2)}, {vr(VG, 2)} op_sel_hi:[1,0]')
            for p in range(2):
                o = 16 * TT + 4 * q + 2 * p
                a(f'v_pk_fma_f32 {vr(AH + o, 2)}, {vr(AH + o, 2)}, {vr(VOMG, 2)}, {vr(AO + o, 2)} op_sel_hi:[1,0,1]')
            a(f'ds_write_b128 v{100 + q}, {vr(AH + 16 * TT + 4 * q)} offset:{128 * TT}')
    a('s_waitcnt lgkmcnt(0)\ns_barrier')
    for k in range(4):
        a(f'ds_read_b128 {vr(64 + 8 * k)}, v106 offset:{16384 * k}')
        a(f'ds_read_b128 {vr(68 + 8 * k)}, v107 offset:{16384 * k}')
    a('s_waitcnt lgkmcnt(4)')
    for p in range(4):
        a(f'v_pk_add_f32 {vr(64 + 2 * p, 2)}, {vr(64 + 2 * p, 2)}, {vr(72 + 2 * p, 2)}')
    a('s_waitcnt lgkmcnt(0)')
    for p in range(4):
        a(f'v_pk_add_f32 {vr(80 + 2 * p, 2)}, {vr(80 + 2 * p, 2)}, {vr(88 + 2 * p, 2)}')
    for p in range(4):
        a(f'v_pk_add_f32 {vr(64 + 2 * p, 2)}, {vr(64 + 2 * p, 2)}, {vr(80 + 2 * p, 2)}')
    for p in range(4):
        a(f'v_cvt_pk_bf16_f32 v{96 + p}, v{64 + 2 * p}, v{64 + 2 * p + 1}')
    a(f'buffer_store_dwordx4 v[96:99], v104, {SOUT}, s64 offen')
    stamp(10)
    a(f'''
    s_cmp_lg_u32 s33, 0
    s_cbranch_scc1 L_fin1
    s_waitcnt vmcnt(1)
    v_xor_b32 v110, {sTAG}, v110
    v_xor_b32 v111, {sTAG}, v111
    v_or_b32 v110, v110, v111
    v_cmp_ne_u32 vcc, 0, v110
    s_cbranch_vccz L_fin2
    ''')
    poll('v108', 's74')
    poll('v108', 's75')
    a(f'L_fin2:\ns_mov_b32 s64, {WS_EPOCH}')
    flag('s64')
    a('L_fin1:')
    if profile:
        a('s_waitcnt vmcnt(0)')
        stamp(11)
        a(f'''
        s_lshl_b32 s64, s2, 3
        s_add_u32 s64, s64, {sWAVE}
        s_lshl_b32 s64, s64, 6
        s_add_u32 s64, s64, {WS_PROF}
        v_mov_b32 v1, 0
        s_mov_b64 exec, 1
        ''')
        for i in range(16):
            a(f'v_mov_b32 v2, s{80 + i}\nbuffer_store_dword v2, v1, {SWS}, s64 offen offset:{4 * i}')
    a('L_end:\ns_endpgm\nL_p2_spin:')
    poll(f'v{VFL}', 's71')
    a('s_branch L_p2_ook')

    body = a.text()
    errs = hazard.check(body)
    for e in errs:
        print('HAZARD', e, file=sys.stderr)
    head = open('cdna_kernels/' + NAME + '.s.ref').read().split('; Override')[0]
    head += '; @launch grid=(256,1,1) block=(512,1,1) lds=163840\n.amdgcn_target "amdgcn-amd-amdhsa--gfx950"\n'
    return head + kernel_head(K) + body + kernel_desc(K, 256, 256, 100), errs


if __name__ == '__main__':
    prof = 'prof' in sys.argv[1:]
    out = sys.argv[1] if len(sys.argv) > 1 else 'k.s'
    txt, errs = gen(prof, sys.argv[2:])
    open(out, 'w').write(txt)
    print(out, len(txt), 'bytes', len(errs), 'hazards')
```

```python
import sys
from asmlib import *
import hazard

WS_EPOCH = 0
WS_FH = 0x1000
WS_FP = 0x6000
WS_FO = 0x8000
WS_G = 0x10000
WS_PART = 0x20000
WS_A = 0x100000
AREG = 35840
WS_PROF = 0xA00000
WS_SIZE = 0xB00000

SLOT = 40960
MISC = 147456
RED = 98304
NPRE = 18
NPULL = 12

SX, SW, SW2, SWO, SWS, SOUT, SMISC, SWB = 's[4:7]', 's[8:11]', 's[12:15]', 's[16:19]', 's[20:23]', 's[24:27]', 's[28:31]', 's[96:99]'
sWAVE, sR, sTYPE, sC, sR2, sC2, sTAG, sBOUND = 's56', 's57', 's58', 's59', 's60', 's61', 's62', 's63'
sKO = 's3'
vLANE = 'v254'


class Q:
    def __init__(self, a, name, mx):
        self.a, self.name, self.mx = a, name, mx
        self.q = []
    def push(self, tag):
        self.q.append(tag)
        assert len(self.q) <= self.mx, (self.name, len(self.q))
    def wait(self, *tags):
        idx = max([self.q.index(t) for t in tags if t in self.q], default=-1)
        if idx < 0:
            return
        n = len(self.q) - 1 - idx
        self.a(f's_waitcnt {self.name}({n})')
        self.q = self.q[idx + 1:]
    def drain(self):
        self.a(f's_waitcnt {self.name}(0)')
        self.q = []
    def reset(self):
        self.q = []


def vr(b, n=4):
    return f'v[{b}:{b + n - 1}]'


def gen(profile=False, opts=()):
    a = Asm()
    K = NAME + '_kernel'

    def opt(name, dflt):
        for o in opts:
            if o.startswith(name + '='):
                return int(o.split('=')[1], 0)
        return dflt

    diag = 'diag' in opts
    stamp_on = [True]

    def stamp(i):
        if profile and stamp_on[0]:
            a(f'{"s_memtime" if "cyc" in opts else "s_memrealtime"} s[34:35]\ns_waitcnt lgkmcnt(0)\ns_mov_b32 s{80 + i}, s34')

    def srd(name, lo, size):
        b = int(name[2:name.index(':')])
        a(f's_mov_b32 s{b}, s{lo}\ns_mov_b32 s{b + 1}, s{lo + 1}\ns_mov_b32 s{b + 2}, {size}\ns_mov_b32 s{b + 3}, 0x20000')

    def poll(vaddr, soff, vtmp='v255'):
        l0, l1 = a.label('L_poll'), a.label('L_polled')
        a(f'''
        {l0}:
        buffer_load_dword {vtmp}, {vaddr}, {SWS}, {soff} offen sc1
        s_waitcnt vmcnt(0)
        v_cmp_ne_u32 vcc, {sTAG}, {vtmp}
        s_cbranch_vccz {l1}
        s_sub_u32 {sBOUND}, {sBOUND}, 1
        s_cbranch_scc1 {l1}
        s_sleep {opt('SLP', 1)}
        s_branch {l0}
        {l1}:
        ''')

    def flag(soff, vz='v253', vt='v255'):
        a(f'''
        v_mov_b32 {vz}, 0
        v_mov_b32 {vt}, {sTAG}
        s_mov_b64 exec, 1
        buffer_store_dword {vt}, {vz}, {SWS}, {soff} offen sc1
        s_mov_b64 exec, -1
        ''')

    def rest_srds():
        srd(SW2, 46, 1409024)
        srd(SWO, 40, 524288)
        srd(SWS, 54, WS_SIZE)
        srd(SOUT, 50, 2097152)

    def make_tag():
        a(f's_mul_i32 {sTAG}, {sTAG}, 0x9E3779B1\ns_add_u32 {sTAG}, {sTAG}, 0x7F4A7C15\ns_mov_b32 {sBOUND}, 0x80000')

    def afrag_voff(dst, sround, t0, t1):
        if isinstance(sround, int):
            a(f'v_lshrrev_b32 {t0}, 3, {vLANE}\nv_add_u32 {t0}, {8 * sround}, {t0}')
        else:
            a(f'v_lshrrev_b32 {t0}, 3, {vLANE}\nv_lshl_add_u32 {t0}, {sround}, 3, {t0}')
        a(f'''
        v_add_u32 {t1}, 4, {t0}
        v_mul_u32_u24 {t1}, 9363, {t1}
        v_lshrrev_b32 {t1}, 16, {t1}
        v_add_u32 {t0}, {t0}, {t1}
        v_and_b32 {t1}, 7, {vLANE}
        v_lshlrev_b32 {t1}, 4, {t1}
        v_lshl_add_u32 {dst}, {t0}, 7, {t1}
        ''')

    AH, AO, AF, BF, PB = 0, 32, 64, 104, 120
    NSL = 10
    VB2 = [216, 217]
    VFL, VBR, VG, VOMG = 218, 220, 222, 224
    VA = 226
    T = 240

    def b2_addr():
        a(f'''
        v_lshrrev_b32 v250, 5, {vLANE}
        v_bfe_u32 v251, {vLANE}, 2, 2
        v_lshl_add_u32 v250, v250, 2, v251
        v_lshlrev_b32 v250, 7, v250
        v_lshrrev_b32 v251, 1, v251
        v_lshl_add_u32 v250, v251, 6, v250
        v_bfe_u32 v251, {vLANE}, 4, 1
        v_lshl_add_u32 v250, v251, 5, v250
        v_and_b32 v251, 3, {vLANE}
        v_lshl_add_u32 v250, v251, 3, v250
        s_and_b32 s35, {sWAVE}, 3
        s_lshl_b32 s35, s35, 11
        v_add_u32 v{VB2[0]}, s35, v250
        v_xor_b32 v{VB2[1]}, 64, v{VB2[0]}
        ''')

    def pulls():
        n = 0
        for t in range(NPULL):
            if t == 8:
                a(f'v_add_u32 v{VB2[0]}, 0x10000, v{VB2[0]}\nv_add_u32 v{VB2[1]}, 0x10000, v{VB2[1]}')
            for TT in range(2):
                for h in range(2):
                    a(f'ds_read_b64_tr_b16 {vr(PB + 8 * t + 4 * TT + 2 * h, 2)}, v{VB2[TT]} offset:{(t & 7) * 8192 + 1024 * h}')
                    n += 1
                    if n >= 8 and n % 4 == 0:
                        a('s_waitcnt lgkmcnt(8)')
        a('s_waitcnt lgkmcnt(0)')

    def reload_setup():
        a(f'''
        v_lshrrev_b32 v250, 3, {vLANE}
        v_and_b32 v251, 7, {vLANE}
        v_bfe_u32 v252, {vLANE}, 4, 1
        v_lshlrev_b32 v252, 2, v252
        v_xor_b32 v251, v251, v252
        v_lshlrev_b32 v251, 4, v251
        s_and_b32 s35, {sWAVE}, 3
        s_lshl_b32 s34, s35, 4
        v_add_u32 v250, s34, v250
        v_lshl_add_u32 v{VBR}, v250, 10, v251
        v_add_u32 v{VBR + 1}, 7168, v{VBR}
        s_lshl_b32 s65, s35, 11
        s_lshl_b32 s66, {sC2}, 7
        ''')

    def bround_ops(t, lds):
        srdn, row = (SW2, t) if t < 22 else (SWO, t - 22)
        return [f's_add_u32 m0, s65, {lds}\ns_add_u32 s64, s66, {row * 65536}\nbuffer_load_dwordx4 v{VBR}, {srdn}, s64 offen lds',
                f'buffer_load_dwordx4 v{VBR + 1}, {srdn}, s64 offen offset:1024 lds']

    def reload():
        WR = opt('WR', 8)
        n = 0
        for t in range(NPRE, 30):
            for op in bround_ops(t, (t - NPRE) * 8192):
                if n >= WR:
                    a(f's_waitcnt vmcnt({WR - 1})')
                a(op)
                n += 1

    a(f'''
    s_cmp_ge_u32 s2, 256
    s_cbranch_scc1 L_end
    s_load_dwordx16 s[36:51], s[0:1], 0
    s_load_dwordx4 s[52:55], s[0:1], 64
    v_lshrrev_b32 v1, 6, v0
    v_and_b32 {vLANE}, 63, v0
    s_and_b32 s64, s2, 7
    v_readfirstlane_b32 {sWAVE}, v1
    s_lshr_b32 s65, s2, 3
    s_and_b32 s66, s65, 3
    s_lshr_b32 {sR}, s64, 1
    s_lshl_b32 {sR}, {sR}, 2
    s_add_u32 {sR}, {sR}, s66
    s_lshl_b32 {sR2}, s64, 2
    s_add_u32 {sR2}, {sR2}, s66
    ''')
    if opt('map', 1) == 0:
        a(f'''
        s_bfe_u32 {sTYPE}, s65, 0x10002
        s_and_b32 {sC}, s64, 1
        s_lshl_b32 {sC}, {sC}, 2
        s_lshr_b32 s67, s65, 3
        s_add_u32 {sC}, {sC}, s67
        s_lshr_b32 {sC2}, s65, 2
        ''')
    else:
        a(f'''
        s_and_b32 {sTYPE}, s64, 1
        s_lshr_b32 {sC}, s65, 2
        s_xor_b32 {sC2}, {sC}, 4
        ''')
    a(f's_lshl_b32 s66, s66, 2\ns_lshr_b32 {sKO}, {opt("KO", 0x1010)}, s66\ns_and_b32 {sKO}, {sKO}, 7')
    if profile:
        for i in range(16):
            a(f's_mov_b32 s{80 + i}, 0')
        a('s_memrealtime s[34:35]\ns_waitcnt lgkmcnt(0)\ns_mov_b32 s95, s34')
    a(f'''
    s_cmp_lt_u32 {sWAVE}, 4
    s_cbranch_scc1 L_compute
    ''')

    VX = [200, 201, 202, 203]
    VW = [204, 205]
    VGATE = 180
    VGA = 188
    a(f'''
    s_sub_u32 s68, {sWAVE}, 4
    s_cmp_eq_u32 {sTYPE}, 1
    s_movk_i32 s69, 3072
    s_cmov_b32 s69, 2752
    v_lshrrev_b32 v1, 3, {vLANE}
    v_and_b32 v2, 7, {vLANE}
    v_lshrrev_b32 v3, 4, {vLANE}
    v_xor_b32 v4, v2, v3
    v_lshlrev_b32 v5, 10, v1
    v_lshl_add_u32 v{VX[0]}, v4, 4, v5
    v_xor_b32 v6, 64, v{VX[0]}
    v_add_u32 v{VX[1]}, 7168, v6
    v_add_u32 v{VX[2]}, 14336, v{VX[0]}
    v_add_u32 v{VX[3]}, 21504, v6
    v_and_b32 v3, 1, v3
    v_lshlrev_b32 v3, 2, v3
    v_xor_b32 v4, v2, v3
    v_lshlrev_b32 v4, 4, v4
    s_lshl_b32 s64, s68, 4
    v_add_u32 v1, s64, v1
    v_mul_u32_u24 v6, s69, v1
    v_add_u32 v{VW[0]}, v6, v4
    s_lshl_b32 s64, s69, 3
    s_sub_u32 s64, s64, 1024
    v_add_u32 v{VW[1]}, s64, v{VW[0]}
    s_lshl_b32 s70, {sR}, 17
    s_lshl_b32 s64, s68, 15
    s_add_u32 s70, s70, s64
    s_lshl_b32 s74, s69, 6
    s_lshl_b32 s75, s68, 12
    s_lshl_b32 s76, s68, 11
    s_add_u32 s76, s76, 16384
    s_add_u32 s77, s76, 8192
    s_add_u32 s78, s76, 16384
    s_lshl_b32 s79, {sKO}, 7
    s_mul_i32 s67, {sKO}, s74
    s_lshl_b32 s66, s74, 3
    s_mov_b32 s33, 0
    s_mov_b32 s32, -1
    s_cmp_eq_u32 {sTYPE}, 1
    s_cbranch_scc1 L_h_ffn
    s_lshl_b32 s71, {sC}, 7
    s_add_u32 s72, s71, 1024
    s_add_u32 s73, s71, 2048
    s_branch L_h_go
    L_h_ffn:
    s_mul_i32 s71, {sC}, 384
    s_add_u32 s72, s71, 128
    s_add_u32 s73, s71, 256
    s_cmp_lg_u32 {sC}, 7
    s_cbranch_scc1 L_h_go
    s_mov_b32 s32, 0
    s_mov_b32 s77, s78
    s_cmp_eq_u32 s68, 0
    s_cselect_b32 s33, 1, 0
    L_h_go:
    s_waitcnt lgkmcnt(0)
    s_load_dword {sTAG}, s[54:55], {WS_EPOCH}
    ''')
    srd(SX, 36, 2097152)
    a(f'''
    s_cmp_eq_u32 {sTYPE}, 1
    s_cselect_b64 s[8:9], s[44:45], s[38:39]
    s_mov_b32 s10, 1572864
    s_cmov_b32 s10, 1409024
    s_mov_b32 s11, 0x20000
    s_mov_b64 s[96:97], s[8:9]
    s_and_b32 s98, s10, s32
    s_mov_b32 s99, 0x20000
    s_cmp_eq_u32 s33, 0
    s_cbranch_scc1 L_h_nogate0
    ''')
    srd(SMISC, 48, 1024)
    a(f'v_lshlrev_b32 v1, 1, {vLANE}')
    for j in range(8):
        a(f's_add_u32 s64, s79, {128 * j}\ns_and_b32 s64, s64, 1023')
        a(f'buffer_load_ushort v{VGATE + j}, v1, {SMISC}, s64 offen')
    a(f'''
    v_lshlrev_b32 v2, 5, {vLANE}
    v_and_b32 v2, 64, v2
    v_lshl_add_u32 v{VGA}, {vLANE}, 7, v2
    v_add_u32 v{VGA}, {16384 + 8192}, v{VGA}
    v_xor_b32 v{VGA + 1}, 64, v{VGA}
    v_add_u32 v{VGA + 2}, {2 * SLOT}, v{VGA}
    v_add_u32 v{VGA + 3}, {2 * SLOT}, v{VGA + 1}
    L_h_nogate0:
    ''')

    W1 = opt('W1', 10)
    ops = []
    for st in range(8):
        sl = (st & 3) * SLOT
        for j in range(4):
            pre = f's_add_u32 m0, s75, {sl}\ns_add_u32 s64, s70, s79\n' if j == 0 else ''
            post = '\ns_add_u32 s79, s79, 128\ns_and_b32 s79, s79, 1023' if j == 3 else ''
            ops.append(pre + f'buffer_load_dwordx4 v{VX[j]}, {SX}, s64 offen offset:{1024 * j} lds' + post)
        for b in range(3):
            sw = SW if b == 0 else SWB
            post = '\ns_add_u32 s67, s67, s74\ns_cmp_eq_u32 s67, s66\ns_cselect_b32 s67, 0, s67' if b == 2 else ''
            ops.append(f's_add_u32 m0, s{76 + b}, {sl}\ns_add_u32 s64, s{71 + b}, s67\nbuffer_load_dwordx4 v{VW[0]}, {sw}, s64 offen lds')
            ops.append(f'buffer_load_dwordx4 v{VW[1]}, {sw}, s64 offen offset:1024 lds' + post)
    for t in range(NPRE):
        ops += bround_ops(t, t * 8192)

    def gate_write(st):
        lab = a.label('L_h_nogate')
        a(f's_cmp_eq_u32 s33, 0\ns_cbranch_scc1 {lab}')
        sts = [st] if st >= 4 else [0, 1, 2, 3]
        for u in sts:
            o = (u & 1) * SLOT
            k = ((u >> 1) & 1) * 2
            a(f'ds_write_b16 v{VGA + k}, v{VGATE + u} offset:{o}')
            a(f'ds_write_b16 v{VGA + k + 1}, v{VGATE + u} offset:{o}')
        a(f'{lab}:')

    nbar = 0
    WB = opt('WB', 0)
    NB8 = opt('NB8', 89 + W1)
    NA = opt('NA', NB8 + 6)
    for n, op in enumerate(ops):
        need = (n // 10 - 3) if n < 80 else 5 + (n - 80) // 10
        assert need < nbar, (n, need, nbar)
        if n == 80:
            reload_setup()
        if n == NA:
            a(f's_cmp_eq_u32 {sTYPE}, 1\ns_cbranch_scc1 L_h_noA\ns_barrier\nL_h_noA:')
        if WB and n > NB8:
            a(f's_waitcnt vmcnt({WB - 1})')
        if ('noload' not in opts or n >= 80):
            a(op)
        if n == 9:
            rest_srds()
            if 'cpf' in opts:
                a(f'''
                s_cmp_lg_u32 s68, 3
                s_cbranch_scc1 L_h_nocpf
                s_getpc_b64 s[34:35]
                v_lshlrev_b32 v1, 7, {vLANE}
                global_load_dword v2, v1, s[34:35]
                v_add_u32 v1, 0x2000, v1
                global_load_dword v3, v1, s[34:35]
                L_h_nocpf:
                ''')
        if nbar < 8 and n == 10 * (nbar + 1) - 1 + W1:
            if nbar == 0:
                a(f's_waitcnt vmcnt({W1}) lgkmcnt(0)')
                gate_write(0)
                make_tag()
            a(f's_waitcnt vmcnt({W1}) lgkmcnt(0)')
            if diag or nbar == 0:
                stamp(nbar)
            a('s_barrier')
            if 1 <= nbar <= 4:
                gate_write(nbar + 3)
            nbar += 1
        elif nbar == 8 and n == NB8:
            a('s_barrier')
            if diag:
                stamp(8)
            nbar += 1
    assert nbar == 9 and NA > NB8
    b2_addr()
    if diag:
        a('s_waitcnt vmcnt(0)')
        stamp(9)
        stamp_on[0] = False
    stamp(1)
    a(f's_cmp_eq_u32 {sTYPE}, 0\ns_cbranch_scc1 L_h_attn')
    a('s_waitcnt vmcnt(0)\ns_barrier')
    pulls()
    a('s_barrier')
    stamp(2)
    reload()
    a('s_branch L_phase2')
    IDN, PQ, PP, KVF = 112, 96, 32, 16
    a(f'''
    L_h_attn:
    v_and_b32 v1, 31, {vLANE}
    v_lshrrev_b32 v2, 5, {vLANE}
    v_lshlrev_b32 v3, 2, v2
    v_sub_u32 v3, v1, v3
    v_subrev_u32 v4, 4, v3
    v_cmp_gt_u32 vcc, 8, v3
    s_nop 1
    v_cndmask_b32 v4, v4, v3, vcc
    v_and_b32 v5, 4, v3
    v_cmp_eq_u32 vcc, 0, v5
    v_cmp_gt_u32 s[64:65], 12, v3
    s_and_b64 vcc, vcc, s[64:65]
    v_mov_b32 v5, 64
    s_nop 0
    v_cndmask_b32 v4, v5, v4, vcc
    v_and_b32 v5, 1, v4
    v_lshlrev_b32 v5, 4, v5
    v_mov_b32 v6, 0x3f80
    v_lshlrev_b32 v5, v5, v6
    v_lshrrev_b32 v4, 1, v4
    ''')
    for p in range(4):
        a(f'v_cmp_eq_u32 vcc, {p}, v4\ns_nop 1\nv_cndmask_b32 v{IDN + p}, 0, v5, vcc')
    a(f'''
    v_min_u32 v3, 16, v1
    v_lshl_add_u32 v3, v2, 5, v3
    v_lshlrev_b32 v116, 4, v3
    v_min_u32 v117, 15, {vLANE}
    v_lshlrev_b32 v117, 2, v117
    v_lshlrev_b32 v118, 4, {vLANE}
    s_lshr_b32 s64, s68, 1
    s_lshl_b32 s64, s64, 12
    s_and_b32 s65, s68, 1
    s_lshl_b32 s65, s65, 10
    s_add_u32 s64, s64, s65
    s_add_u32 s64, s64, {MISC}
    v_add_u32 v118, s64, v118
    s_add_u32 s64, {sC}, 22
    ''')
    afrag_voff('v119', 's64', 'v3', 'v4')
    a(f'''
    s_lshl_b32 s66, {sC}, 2
    s_add_u32 s66, s66, s68
    s_lshl_b32 s67, s66, 8
    s_add_u32 s67, s67, {WS_FP}
    s_lshl_b32 s66, s66, 14
    s_add_u32 s66, s66, {WS_PART}
    s_waitcnt vmcnt(0)
    s_barrier
    ''')
    for tl in range(4):
        a(f'ds_read_b128 {vr(PQ + 4 * tl)}, v118 offset:{(tl >> 1) * 8192 + (tl & 1) * 2048}')
    pulls()
    a('s_barrier')
    stamp(2)
    poll('v117', 's67')
    stamp(3)
    vm = Q(a, 'vmcnt', 63)
    for r in range(16):
        a(f'buffer_load_dwordx4 {vr(PP + 4 * r)}, v116, {SWS}, s66 offen offset:{(r & 3) * 1024} sc1')
        vm.push(r)
        if r & 3 == 3 and r < 15:
            a('s_add_u32 s66, s66, 4096')
    a(f'''
    s_lshl_b32 s64, {sR}, 4
    s_add_u32 s64, s64, s68
    s_mul_i32 s64, s64, {AREG}
    s_add_u32 s64, s64, {WS_A}
    s_lshl_b32 s65, {sR}, 2
    s_add_u32 s65, s65, s68
    s_lshl_b32 s65, s65, 8
    s_lshl_b32 s67, {sC}, 2
    s_add_u32 s65, s65, s67
    s_add_u32 s65, s65, {WS_FO}
    s_mov_b32 s67, 0x358637bd
    ''')
    for r in range(16):
        vm.wait(r)
        a(f'v_mfma_f32_32x32x16_bf16 v[0:15], {vr(IDN)}, {vr(PP + 4 * r)}, {"0" if r == 0 else "v[0:15]"}')
    a('s_nop 11')
    for p in range(4):
        a(f'v_cvt_pk_bf16_f32 v{KVF + p}, v{2 * p}, v{2 * p + 1}')
    a('s_nop 1')
    for tl in range(4):
        a(f'v_mfma_f32_32x32x16_bf16 {vr(32 + 16 * tl, 16)}, {vr(KVF)}, {vr(PQ + 4 * tl)}, 0')
    a('s_nop 8')
    for tl in range(4):
        d = 32 + 16 * tl
        a(f'v_add_f32 v{d + 8}, s67, v{d + 8}\nv_rcp_f32 v{d + 8}, v{d + 8}\ns_nop 0')
        for p in range(4):
            a(f'v_pk_mul_f32 {vr(d + 2 * p, 2)}, {vr(d + 2 * p, 2)}, {vr(d + 8, 2)} op_sel_hi:[1,0]')
        for p in range(4):
            a(f'v_cvt_pk_bf16_f32 v{d + 12 + p}, v{d + 2 * p}, v{d + 2 * p + 1}')
        a(f'buffer_store_dwordx4 {vr(d + 12)}, v119, {SWS}, s64 offen sc1')
        a(f's_add_u32 s64, s64, {4 * AREG}')
    a('s_waitcnt vmcnt(0)')
    flag('s65')
    stamp(4)
    a('s_branch L_phase2')

    FX = [[96, 100], [104, 108]]
    FW = [[112, 116, 120], [124, 128, 132]]
    VXA = [[136, 137, 138, 139], [140, 141, 142, 143]]
    VWA = [144, 145]
    a(f'''
    L_compute:
    s_lshr_b32 s68, {sWAVE}, 1
    s_and_b32 s69, {sWAVE}, 1
    v_and_b32 v1, 31, {vLANE}
    v_lshrrev_b32 v2, 5, {vLANE}
    v_bfe_u32 v3, {vLANE}, 1, 3
    v_xor_b32 v3, v2, v3
    s_lshl_b32 s64, s68, 6
    v_add_u32 v1, s64, v1
    v_lshlrev_b32 v1, 7, v1
    v_lshl_add_u32 v{VXA[0][0]}, v3, 4, v1
    ''')
    for ks in range(1, 4):
        a(f'v_xor_b32 v{VXA[0][ks]}, {32 * ks}, v{VXA[0][0]}')
    for ks in range(4):
        a(f'v_add_u32 v{VXA[1][ks]}, {2 * SLOT}, v{VXA[0][ks]}')
    a(f'''
    v_bfe_u32 v3, {vLANE}, 2, 2
    v_lshl_add_u32 v4, v2, 3, v3
    v_lshlrev_b32 v4, 7, v4
    v_lshrrev_b32 v3, 1, v3
    v_xor_b32 v3, s69, v3
    v_lshl_add_u32 v4, v3, 6, v4
    v_bfe_u32 v3, {vLANE}, 4, 1
    v_lshl_add_u32 v4, v3, 5, v4
    v_and_b32 v3, 3, {vLANE}
    v_lshl_add_u32 v4, v3, 3, v4
    v_add_u32 v{VWA[0]}, 16384, v4
    v_add_u32 v{VWA[1]}, {16384 + 2 * SLOT}, v4
    s_waitcnt lgkmcnt(0)
    s_load_dword {sTAG}, s[54:55], {WS_EPOCH}
    ''')
    rest_srds()
    b2_addr()
    VE0, VE1, VE2 = 233, 234, 235
    reload_setup()
    a(f's_cmp_eq_u32 {sTYPE}, 1\ns_cbranch_scc1 L_c_setf')
    a(f'''
    s_mov_b32 s70, 0x3fb8aa3b
    s_mov_b32 s72, 0x358637bd
    s_mov_b32 s74, 0x0000ffff
    s_mov_b32 s75, 0x0000ffff
    s_lshl_b32 s64, s68, 4
    v_xor_b32 v{VE0}, s64, {vLANE}
    v_lshlrev_b32 v{VE0}, 4, v{VE0}
    v_lshlrev_b32 v{VE1}, 4, {vLANE}
    s_lshl_b32 s64, {sWAVE}, 12
    s_add_u32 s64, s64, {MISC}
    v_add_u32 v{VE1}, s64, v{VE1}
    v_xor_b32 v{VE2}, 8192, v{VE1}
    s_lshl_b32 s76, {sC}, 2
    s_lshl_b32 s77, s69, 1
    s_add_u32 s76, s76, s77
    s_add_u32 s76, s76, s68
    s_lshl_b32 s77, s76, 8
    s_lshl_b32 s78, {sR}, 2
    s_add_u32 s77, s77, s78
    s_add_u32 s77, s77, {WS_FP}
    s_lshl_b32 s76, s76, 4
    s_add_u32 s76, s76, {sR}
    s_lshl_b32 s76, s76, 10
    s_add_u32 s76, s76, {WS_PART}
    s_cmp_eq_u32 s68, 0
    s_mov_b32 s78, 0xffff0001
    s_cmov_b32 s78, 0x1ffff
    s_mov_b32 s79, s78
    s_branch L_c_set1
    L_c_setf:
    s_mov_b32 s70, 0xbfb8aa3b
    s_lshl_b32 s64, {sR}, 2
    s_lshl_b32 s65, s68, 1
    s_add_u32 s64, s64, s65
    s_lshl_b32 s66, s64, 8
    s_lshl_b32 s64, s64, 2
    s_lshl_b32 s65, s69, 1
    s_add_u32 s64, s64, s65
    s_mul_i32 s64, s64, {AREG}
    s_add_u32 s72, s64, {WS_A}
    s_add_u32 s73, s72, {AREG}
    s_add_u32 s74, s72, {4 * AREG}
    s_add_u32 s75, s73, {4 * AREG}
    s_lshl_b32 s76, s69, 14
    s_add_u32 s76, s76, s66
    s_add_u32 s76, s76, {WS_G}
    s_lshl_b32 s77, {sR}, 1
    s_add_u32 s77, s77, s68
    s_lshl_b32 s77, s77, 1
    s_add_u32 s77, s77, s69
    s_lshl_b32 s77, s77, 8
    s_lshl_b32 s66, {sC}, 2
    s_add_u32 s77, s77, s66
    s_add_u32 s77, s77, {WS_FH}
    s_mul_i32 s64, {sC}, 3
    ''')
    for b in range(3):
        afrag_voff(f'v{VE0 + b}', 's64', 'v1', 'v2')
        a('s_add_u32 s64, s64, 1')
    a('L_c_set1:')
    for i in range(96):
        a(f'v_mov_b32 v{i}, 0')
    a('s_waitcnt lgkmcnt(0)')
    make_tag()
    stamp(0)
    a('s_barrier')

    def reads(stage, ks, buf):
        st, par = (stage >> 1) & 1, stage & 1
        xo = par * SLOT
        wo = par * SLOT + ks * 2048
        r = []
        r.append((f'ds_read_b128 {vr(FX[buf][0])}, v{VXA[st][ks]} offset:{xo}', ('x', buf, 0)))
        r.append((f'ds_read_b64_tr_b16 {vr(FW[buf][0], 2)}, v{VWA[st]} offset:{wo}', ('wa', buf, 0)))
        r.append((f'ds_read_b64_tr_b16 {vr(FW[buf][0] + 2, 2)}, v{VWA[st]} offset:{wo + 512}', ('w', buf, 0)))
        r.append((f'ds_read_b128 {vr(FX[buf][1])}, v{VXA[st][ks]} offset:{xo + 4096}', ('x', buf, 1)))
        for b in (1, 2):
            r.append((f'ds_read_b64_tr_b16 {vr(FW[buf][b], 2)}, v{VWA[st]} offset:{wo + b * 8192}', ('wa', buf, b)))
            r.append((f'ds_read_b64_tr_b16 {vr(FW[buf][b] + 2, 2)}, v{VWA[st]} offset:{wo + b * 8192 + 512}', ('w', buf, b)))
        return r

    def mainloop(attn, lab):
        if 'nomfma' in opts:
            a('s_barrier\n' * 8)
            return
        lg = Q(a, 'lgkmcnt', 15)
        for ins, tag in reads(0, 0, 0):
            a(ins); lg.push(tag)
        a(f's_mov_b32 s64, 2\n{lab}:')
        for stage in range(4):
            for ks in range(4):
                buf = ks & 1
                nxt = reads(stage, ks + 1, buf ^ 1) if ks < 3 else reads((stage + 1) & 3, 0, buf ^ 1)
                order = [(0, 0), (0, 1), (1, 0), (1, 1), (2, 0), (2, 1)]
                start = 0 if ks < 3 else 2
                for i, (b, m) in enumerate(order):
                    lg.wait(('x', buf, m), ('w', buf, b))
                    acc = vr(16 * (2 * b + m), 16)
                    x, w = vr(FX[buf][m]), vr(FW[buf][b])
                    if attn and b > 0:
                        a(f'v_mfma_f32_32x32x16_bf16 {acc}, {x}, {w}, {acc}')
                    else:
                        a(f'v_mfma_f32_32x32x16_bf16 {acc}, {w}, {x}, {acc}')
                    if ks == 3 and i == 1:
                        lg.drain()
                        a('s_barrier')
                    if start <= i + (1 if ks == 3 else 0) and nxt:
                        n = 2 if ks < 3 else (3 if i < 3 else 2)
                        for ins, tag in nxt[:n]:
                            a(ins); lg.push(tag)
                        nxt = nxt[n:]
                assert not nxt
        a(f's_sub_u32 s64, s64, 1\ns_cmp_lg_u32 s64, 0\ns_cbranch_scc1 {lab}')
        a('s_waitcnt lgkmcnt(0)\ns_nop 7')

    a(f's_cmp_eq_u32 {sTYPE}, 1\ns_cbranch_scc1 L_c_ffn')
    mainloop(True, 'L_ml_attn')
    stamp(1)
    PK, VF, ONE, KV, ZZ = 96, 112, 128, 160, 176
    for p in range(4):
        a(f'v_mov_b32 v{ONE + p}, 0x3f803f80')
    assert (MISC >> 13) & 1 == 0

    def phi8(src, dst):
        for p in range(4):
            a(f'v_pk_mul_f32 {vr(T + 2 * p, 2)}, {vr(src + 2 * p, 2)}, s[70:71] op_sel_hi:[1,0]')
        for i in range(8):
            a(f'v_exp_f32 v{T + i}, v{T + i} clamp')
        for i in range(8):
            a(f'v_max_f32 v{src + i}, s72, v{src + i}')
        for p in range(4):
            a(f'v_pk_add_f32 {vr(T + 2 * p, 2)}, {vr(T + 2 * p, 2)}, {vr(src + 2 * p, 2)}')
        for p in range(4):
            a(f'v_cvt_pk_bf16_f32 v{dst + p}, v{T + 2 * p}, v{T + 2 * p + 1}')

    for g in range(4):
        phi8(32 + 8 * g, PK + 4 * g)
        for p in range(4):
            a(f'v_cvt_pk_bf16_f32 v{VF + 4 * g + p}, v{64 + 8 * g + 2 * p}, v{64 + 8 * g + 2 * p + 1}')
        a('s_nop 1')
        a(f'v_mfma_f32_32x32x16_bf16 {vr(KV, 16)}, {vr(PK + 4 * g)}, {vr(VF + 4 * g)}, {"0" if g == 0 else vr(KV, 16)}')
        a(f'v_mfma_f32_32x32x16_bf16 {vr(ZZ, 16)}, {vr(PK + 4 * g)}, {vr(ONE)}, {"0" if g == 0 else vr(ZZ, 16)}')
    PQW = 192
    phi8(0, PQW)
    for j in range(8):
        a(f'v_cndmask_b32 v{KV + j}, v{ZZ + j}, v{KV + j}, s[74:75]')
    for j in range(8, 16):
        a(f'v_cndmask_b32 v{KV + j}, v{KV + j}, v{ZZ + j}, s[74:75]')
    a(f'''
    s_cmp_eq_u32 s68, 0
    s_cbranch_scc1 L_a_wr0
    ds_write_b128 v{VE2}, {vr(KV)}
    ds_write_b128 v{VE2}, {vr(KV + 4)} offset:1024
    ''')
    for j in range(8):
        a(f'v_mov_b32 v{KV + j}, v{KV + 8 + j}')
    a(f'''
    s_branch L_a_wr1
    L_a_wr0:
    ds_write_b128 v{VE2}, {vr(KV + 8)}
    ds_write_b128 v{VE2}, {vr(KV + 12)} offset:1024
    L_a_wr1:
    s_waitcnt lgkmcnt(0)
    s_barrier
    ds_read_b128 {vr(ZZ)}, v{VE1}
    ds_read_b128 {vr(ZZ + 4)}, v{VE1} offset:1024
    s_waitcnt lgkmcnt(0)
    ''')
    for p in range(4):
        a(f'v_pk_add_f32 {vr(KV + 2 * p, 2)}, {vr(KV + 2 * p, 2)}, {vr(ZZ + 2 * p, 2)}')
    for p in range(4):
        a(f'v_cvt_pk_bf16_f32 v{KV + 8 + p}, v{KV + 2 * p}, v{KV + 2 * p + 1}')
    a(f's_mov_b64 exec, s[78:79]\nbuffer_store_dwordx4 {vr(KV + 8)}, v{VE0}, {SWS}, s76 offen sc1\ns_mov_b64 exec, -1')
    stamp(4)
    for g in range(1, 4):
        phi8(8 * g, PQW + 4 * g)
    for g in range(4):
        a(f'ds_write_b128 v{VE1}, {vr(PQW + 4 * g)} offset:{1024 * g}')
    stamp(3)
    a('s_waitcnt vmcnt(0)')
    flag('s77')
    stamp(2)
    a('s_waitcnt lgkmcnt(0)\ns_barrier')
    pulls()
    a('s_barrier')
    reload()
    a('s_branch L_phase2')

    a('L_c_ffn:')
    mainloop(False, 'L_ml_ffn')
    stamp(1)

    def silu8(src, dst):
        for p in range(4):
            a(f'v_pk_mul_f32 {vr(T + 2 * p, 2)}, {vr(src + 2 * p, 2)}, s[70:71] op_sel_hi:[1,0]')
        for i in range(8):
            a(f'v_exp_f32 v{T + i}, v{T + i}')
        for p in range(4):
            a(f'v_pk_add_f32 {vr(T + 2 * p, 2)}, {vr(T + 2 * p, 2)}, 1.0 op_sel_hi:[1,0]')
        for i in range(8):
            a(f'v_rcp_f32 v{T + i}, v{T + i}')
        for p in range(4):
            a(f'v_pk_mul_f32 {vr(T + 2 * p, 2)}, {vr(T + 2 * p, 2)}, {vr(src + 2 * p, 2)}')
        for p in range(4):
            a(f'v_cvt_pk_bf16_f32 v{dst + p}, v{T + 2 * p}, v{T + 2 * p + 1}')

    n = 0
    for b in range(3):
        for m in range(2):
            for f in range(2):
                dst = 96 + 4 * (n % 6); n += 1
                silu8(16 * (2 * b + m) + 8 * f, dst)
                a(f'buffer_store_dwordx4 {vr(dst)}, v{VE0 + b}, {SWS}, s{72 + 2 * m + f} offen sc1')
        if b == 0:
            a(f's_cmp_eq_u32 {sC}, 7\ns_cbranch_scc1 L_f_gate')
    a('s_branch L_f_flag')
    a(f'''
    L_f_gate:
    v_mul_f32 v{T}, s70, v32
    v_mul_f32 v{T + 1}, s70, v48
    v_exp_f32 v{T}, v{T}
    v_exp_f32 v{T + 1}, v{T + 1}
    v_lshlrev_b32 v{T + 2}, 2, {vLANE}
    v_add_f32 v{T}, 1.0, v{T}
    v_add_f32 v{T + 1}, 1.0, v{T + 1}
    v_rcp_f32 v{T}, v{T}
    v_rcp_f32 v{T + 1}, v{T + 1}
    s_mov_b32 exec_hi, 0
    buffer_store_dword v{T}, v{T + 2}, {SWS}, s76 offen sc1
    buffer_store_dword v{T + 1}, v{T + 2}, {SWS}, s76 offen offset:256 sc1
    s_mov_b64 exec, -1
    L_f_flag:
    ''')
    stamp(3)
    if 'flaglate' not in opts:
        a('s_waitcnt vmcnt(0)')
        flag('s77')
        stamp(2)
    a('s_barrier')
    pulls()
    a('s_barrier')
    if 'flaglate' in opts:
        a('s_waitcnt vmcnt(0)')
        flag('s77')
        stamp(2)

    a(f'''
    L_phase2:
    s_and_b32 s68, {sWAVE}, 3
    s_lshr_b32 s69, {sWAVE}, 2
    v_min_u32 v{VFL}, 7, {vLANE}
    v_lshlrev_b32 v{VFL}, 2, v{VFL}
    v_and_b32 v5, 31, {vLANE}
    v_lshlrev_b32 v5, 2, v5
    s_lshl_b32 s64, {sR2}, 1
    s_add_u32 s64, s64, s69
    s_lshl_b32 s65, s64, 8
    s_lshl_b32 s64, s64, 2
    s_add_u32 s64, s64, s68
    s_mul_i32 s70, s64, {AREG}
    s_add_u32 s70, s70, {WS_A}
    s_lshr_b32 s66, s68, 1
    s_lshl_b32 s67, s66, 14
    s_add_u32 s65, s65, s67
    s_add_u32 s65, s65, {WS_G}
    s_lshl_b32 s64, {sR2}, 1
    s_add_u32 s64, s64, s66
    s_lshl_b32 s64, s64, 8
    s_add_u32 s64, s64, {WS_FH}
    s_lshr_b32 s71, {sR2}, 1
    s_lshl_b32 s71, s71, 2
    s_add_u32 s71, s71, s68
    s_lshl_b32 s71, s71, 8
    s_add_u32 s71, s71, {WS_FO}
    s_lshl_b32 s73, {sC2}, 7
    ''')
    for j in range(7):
        afrag_voff(f'v{VA + j}', j, 'v1', 'v2')
    stamp(5)
    poll(f'v{VFL}', 's64')
    stamp(6)
    vm = Q(a, 'vmcnt', 63)
    lg = Q(a, 'lgkmcnt', 15)
    a(f'buffer_load_dword v{VG}, v5, {SWS}, s65 offen sc1'); vm.push('g')
    W2 = opt('W2', 5)
    NQ = opt('NQ', 19)

    def aload(t):
        if t and t % 7 == 0:
            a('s_add_u32 s70, s70, 8192')
        a(f'buffer_load_dwordx4 {vr(AF + 4 * (t % NSL))}, v{VA + t % 7}, {SWS}, s70 offen sc1')
        vm.push(('A', t))

    stream = [('A', t) for t in range(22)]
    stream.insert(NQ, 'Q')
    state = dict(done=-1, q=False)

    def topup():
        while stream and len(vm.q) < W2:
            it = stream[0]
            if it != 'Q' and it[1] - state['done'] > NSL - 1:
                break
            stream.pop(0)
            if it == 'Q':
                a(f'buffer_load_dword v252, v{VFL}, {SWS}, s71 offen sc1')
                vm.push('Q')
            else:
                aload(it[1])

    def baddr(t):
        return t * 8192 if t < NPRE else (t - NPRE) * 8192

    cur_base = [0x10000]

    def breads(t):
        ad = baddr(t)
        base = ad & ~0xffff
        if base != cur_base[0]:
            dlt = base - cur_base[0]
            for TT in range(2):
                if dlt > 0:
                    a(f'v_add_u32 v{VB2[TT]}, {dlt}, v{VB2[TT]}')
                else:
                    a(f'v_subrev_u32 v{VB2[TT]}, {-dlt}, v{VB2[TT]}')
            cur_base[0] = base
        o = ad - base
        bb = BF + 8 * (t & 1)
        for TT in range(2):
            a(f'ds_read_b64_tr_b16 {vr(bb + 4 * TT, 2)}, v{VB2[TT]} offset:{o}'); lg.push(('ba', t, TT))
            a(f'ds_read_b64_tr_b16 {vr(bb + 4 * TT + 2, 2)}, v{VB2[TT]} offset:{o + 1024}'); lg.push(('b', t, TT))

    def checkq():
        if not state['q'] and 'Q' not in stream and 'Q' not in vm.q:
            state['q'] = True
            stamp(7)
            a(f'v_cmp_ne_u32 vcc, {sTAG}, v252\ns_cbranch_vccnz L_p2_spin\nL_p2_ook:')
            stamp(8)
            stream.extend([('A', u) for u in range(22, 30)])

    topup()
    for t in range(30):
        if t + 1 >= NPULL and t + 1 < 30 and t + 1 != NPRE:
            breads(t + 1)
        while ('A', t) not in vm.q:
            vm.wait(vm.q[0]); checkq(); topup()
        vm.wait(('A', t))
        checkq()
        topup()
        for TT in range(2):
            acc = vr((AH if t < 22 else AO) + 16 * TT, 16)
            if t < NPULL:
                bop = vr(PB + 8 * t + 4 * TT)
            else:
                lg.wait(('b', t, TT))
                bop = vr(BF + 8 * (t & 1) + 4 * TT)
            a(f'v_mfma_f32_32x32x16_bf16 {acc}, {bop}, {vr(AF + 4 * (t % NSL))}, {"0" if t in (0, 22) else acc}')
        state['done'] = t
        if t == NPRE - 1:
            a('s_barrier')
            breads(t + 1)
    assert not stream and state['q']
    stamp(9)
    a(f'''
    s_or_b32 s33, s2, {sWAVE}
    s_cbranch_scc1 L_fin0
    v_lshrrev_b32 v108, 3, {vLANE}
    v_and_b32 v109, 7, {vLANE}
    v_lshlrev_b32 v109, 2, v109
    v_lshl_add_u32 v108, v108, 10, v109
    s_mov_b32 s74, {WS_FH}
    s_mov_b32 s75, {WS_FH + 8192}
    buffer_load_dword v110, v108, {SWS}, s74 offen sc1
    buffer_load_dword v111, v108, {SWS}, s75 offen sc1
    L_fin0:
    v_sub_f32 v{VOMG}, 1.0, v{VG}
    v_and_b32 v100, 31, {vLANE}
    v_lshrrev_b32 v101, 5, {vLANE}
    v_and_b32 v102, 7, {vLANE}
    v_xor_b32 v101, v101, v102
    v_lshlrev_b32 v100, 8, v100
    v_lshl_add_u32 v100, v101, 4, v100
    s_lshl_b32 s64, s68, 14
    s_lshl_b32 s65, s69, 13
    s_add_u32 s64, s64, s65
    s_add_u32 s64, s64, {RED}
    v_add_u32 v100, s64, v100
    v_xor_b32 v101, 32, v100
    v_xor_b32 v102, 64, v100
    v_xor_b32 v103, 96, v100
    v_lshrrev_b32 v104, 3, {vLANE}
    v_and_b32 v105, 7, {vLANE}
    v_lshlrev_b32 v106, 1, v105
    v_xor_b32 v106, v106, v104
    v_lshlrev_b32 v107, 8, v104
    v_lshl_add_u32 v106, v106, 4, v107
    s_lshl_b32 s64, {sWAVE}, 11
    s_add_u32 s64, s64, {RED}
    v_add_u32 v106, s64, v106
    v_xor_b32 v107, 16, v106
    v_lshlrev_b32 v104, 10, v104
    v_lshl_add_u32 v104, v105, 4, v104
    s_lshl_b32 s64, {sR2}, 16
    s_lshl_b32 s65, {sWAVE}, 13
    s_add_u32 s64, s64, s65
    s_add_u32 s64, s64, s73
    ''')
    assert RED % 256 == 0
    for TT in range(2):
        for q in range(4):
            for p in range(2):
                o = 16 * TT + 4 * q + 2 * p
                a(f'v_pk_mul_f32 {vr(AO + o, 2)}, {vr(AO + o, 2)}, {vr(VG, 2)} op_sel_hi:[1,0]')
            for p in range(2):
                o = 16 * TT + 4 * q + 2 * p
                a(f'v_pk_fma_f32 {vr(AH + o, 2)}, {vr(AH + o, 2)}, {vr(VOMG, 2)}, {vr(AO + o, 2)} op_sel_hi:[1,0,1]')
            a(f'ds_write_b128 v{100 + q}, {vr(AH + 16 * TT + 4 * q)} offset:{128 * TT}')
    a('s_waitcnt lgkmcnt(0)\ns_barrier')
    for k in range(4):
        a(f'ds_read_b128 {vr(64 + 8 * k)}, v106 offset:{16384 * k}')
        a(f'ds_read_b128 {vr(68 + 8 * k)}, v107 offset:{16384 * k}')
    a('s_waitcnt lgkmcnt(4)')
    for p in range(4):
        a(f'v_pk_add_f32 {vr(64 + 2 * p, 2)}, {vr(64 + 2 * p, 2)}, {vr(72 + 2 * p, 2)}')
    a('s_waitcnt lgkmcnt(0)')
    for p in range(4):
        a(f'v_pk_add_f32 {vr(80 + 2 * p, 2)}, {vr(80 + 2 * p, 2)}, {vr(88 + 2 * p, 2)}')
    for p in range(4):
        a(f'v_pk_add_f32 {vr(64 + 2 * p, 2)}, {vr(64 + 2 * p, 2)}, {vr(80 + 2 * p, 2)}')
    for p in range(4):
        a(f'v_cvt_pk_bf16_f32 v{96 + p}, v{64 + 2 * p}, v{64 + 2 * p + 1}')
    a(f'buffer_store_dwordx4 v[96:99], v104, {SOUT}, s64 offen')
    stamp(10)
    a(f'''
    s_cmp_lg_u32 s33, 0
    s_cbranch_scc1 L_fin1
    s_waitcnt vmcnt(1)
    v_xor_b32 v110, {sTAG}, v110
    v_xor_b32 v111, {sTAG}, v111
    v_or_b32 v110, v110, v111
    v_cmp_ne_u32 vcc, 0, v110
    s_cbranch_vccz L_fin2
    ''')
    poll('v108', 's74')
    poll('v108', 's75')
    a(f'L_fin2:\ns_mov_b32 s64, {WS_EPOCH}')
    flag('s64')
    a('L_fin1:')
    if profile:
        a('s_waitcnt vmcnt(0)')
        stamp(11)
        a(f'''
        s_lshl_b32 s64, s2, 3
        s_add_u32 s64, s64, {sWAVE}
        s_lshl_b32 s64, s64, 6
        s_add_u32 s64, s64, {WS_PROF}
        v_mov_b32 v1, 0
        s_mov_b64 exec, 1
        ''')
        if 'dbgtime' in opts:
            srd(SMISC, 52, 256)
            a('s_not_b32 s94, s95')
            a(f's_bitcmp1_b32 {sWAVE}, 0\ns_cbranch_scc1 L_end\ns_bitcmp1_b32 {sWAVE}, 1\ns_cbranch_scc1 L_end')
            for i in list(range(12)) + [14, 15]:
                a(f'v_mov_b32 v2, s{80 + i}\nbuffer_atomic_umax v2, v1, {SMISC}, 0 offen offset:{4 * i}')
        else:
            for i in range(16):
                a(f'v_mov_b32 v2, s{80 + i}\nbuffer_store_dword v2, v1, {SWS}, s64 offen offset:{4 * i}')
    a('L_end:\ns_endpgm\nL_p2_spin:')
    poll(f'v{VFL}', 's71')
    a('s_branch L_p2_ook')

    body = a.text()
    errs = hazard.check(body)
    for e in errs:
        print('HAZARD', e, file=sys.stderr)
    head = open('cdna_kernels/' + NAME + '.s.ref').read().split('; Override')[0]
    head += '; @launch grid=(256,1,1) block=(512,1,1) lds=163840\n.amdgcn_target "amdgcn-amd-amdhsa--gfx950"\n'
    return head + kernel_head(K) + body + kernel_desc(K, 256, 256, 100), errs


if __name__ == '__main__':
    prof = 'prof' in sys.argv[1:]
    out = sys.argv[1] if len(sys.argv) > 1 else 'k.s'
    txt, errs = gen(prof, sys.argv[2:])
    open(out, 'w').write(txt)
    print(out, len(txt), 'bytes', len(errs), 'hazards')
```

```python
import sys
from asmlib import *
import hazard

WS_EPOCH = 0
WS_FH = 0x1000
WS_FP = 0x6000
WS_FO = 0x8000
WS_G = 0x10000
WS_PART = 0x20000
WS_A = 0x100000
AREG = 35840
WS_PROF = 0xA00000
WS_SIZE = 0xB00000

SLOT = 40960
MISC = 147456
RED = 98304
NPRE = 18
NPULL = 12

SX, SW, SW2, SWO, SWS, SOUT, SMISC, SWB = 's[4:7]', 's[8:11]', 's[12:15]', 's[16:19]', 's[20:23]', 's[24:27]', 's[28:31]', 's[96:99]'
sWAVE, sR, sTYPE, sC, sR2, sC2, sTAG, sBOUND = 's56', 's57', 's58', 's59', 's60', 's61', 's62', 's63'
sKO = 's3'
vLANE = 'v254'


class Q:
    def __init__(self, a, name, mx):
        self.a, self.name, self.mx = a, name, mx
        self.q = []
    def push(self, tag):
        self.q.append(tag)
        assert len(self.q) <= self.mx, (self.name, len(self.q))
    def wait(self, *tags):
        idx = max([self.q.index(t) for t in tags if t in self.q], default=-1)
        if idx < 0:
            return
        n = len(self.q) - 1 - idx
        self.a(f's_waitcnt {self.name}({n})')
        self.q = self.q[idx + 1:]
    def drain(self):
        self.a(f's_waitcnt {self.name}(0)')
        self.q = []
    def reset(self):
        self.q = []


def vr(b, n=4):
    return f'v[{b}:{b + n - 1}]'


def gen(profile=False, opts=()):
    a = Asm()
    K = NAME + '_kernel'

    def opt(name, dflt):
        for o in opts:
            if o.startswith(name + '='):
                return int(o.split('=')[1], 0)
        return dflt

    diag = 'diag' in opts
    stamp_on = [True]

    def stamp(i):
        if profile and stamp_on[0]:
            a(f'{"s_memtime" if "cyc" in opts else "s_memrealtime"} s[34:35]\ns_waitcnt lgkmcnt(0)\ns_mov_b32 s{80 + i}, s34')

    def srd(name, lo, size):
        b = int(name[2:name.index(':')])
        a(f's_mov_b32 s{b}, s{lo}\ns_mov_b32 s{b + 1}, s{lo + 1}\ns_mov_b32 s{b + 2}, {size}\ns_mov_b32 s{b + 3}, 0x20000')

    def poll(vaddr, soff, vtmp='v255'):
        l0, l1 = a.label('L_poll'), a.label('L_polled')
        a(f'''
        {l0}:
        buffer_load_dword {vtmp}, {vaddr}, {SWS}, {soff} offen sc1
        s_waitcnt vmcnt(0)
        v_cmp_ne_u32 vcc, {sTAG}, {vtmp}
        s_cbranch_vccz {l1}
        s_sub_u32 {sBOUND}, {sBOUND}, 1
        s_cbranch_scc1 {l1}
        s_sleep {opt('SLP', 1)}
        s_branch {l0}
        {l1}:
        ''')

    def flag(soff, vz='v253', vt='v255'):
        a(f'''
        v_mov_b32 {vz}, 0
        v_mov_b32 {vt}, {sTAG}
        s_mov_b64 exec, 1
        buffer_store_dword {vt}, {vz}, {SWS}, {soff} offen sc1
        s_mov_b64 exec, -1
        ''')

    def rest_srds():
        srd(SW2, 46, 1409024)
        srd(SWO, 40, 524288)
        srd(SWS, 54, WS_SIZE)
        srd(SOUT, 50, 2097152)

    def make_tag():
        a(f's_mul_i32 {sTAG}, {sTAG}, 0x9E3779B1\ns_add_u32 {sTAG}, {sTAG}, 0x7F4A7C15\ns_mov_b32 {sBOUND}, 0x80000')

    def afrag_voff(dst, sround, t0, t1):
        if isinstance(sround, int):
            a(f'v_lshrrev_b32 {t0}, 3, {vLANE}\nv_add_u32 {t0}, {8 * sround}, {t0}')
        else:
            a(f'v_lshrrev_b32 {t0}, 3, {vLANE}\nv_lshl_add_u32 {t0}, {sround}, 3, {t0}')
        a(f'''
        v_add_u32 {t1}, 4, {t0}
        v_mul_u32_u24 {t1}, 9363, {t1}
        v_lshrrev_b32 {t1}, 16, {t1}
        v_add_u32 {t0}, {t0}, {t1}
        v_and_b32 {t1}, 7, {vLANE}
        v_lshlrev_b32 {t1}, 4, {t1}
        v_lshl_add_u32 {dst}, {t0}, 7, {t1}
        ''')

    AH, AO, AF, BF, PB = 0, 32, 64, 104, 120
    NSL = 10
    VB2 = [216, 217]
    VFL, VBR, VG, VOMG = 218, 220, 222, 224
    VA = 226
    T = 240

    def b2_addr():
        a(f'''
        v_lshrrev_b32 v250, 5, {vLANE}
        v_bfe_u32 v251, {vLANE}, 2, 2
        v_lshl_add_u32 v250, v250, 2, v251
        v_lshlrev_b32 v250, 7, v250
        v_lshrrev_b32 v251, 1, v251
        v_lshl_add_u32 v250, v251, 6, v250
        v_bfe_u32 v251, {vLANE}, 4, 1
        v_lshl_add_u32 v250, v251, 5, v250
        v_and_b32 v251, 3, {vLANE}
        v_lshl_add_u32 v250, v251, 3, v250
        s_and_b32 s35, {sWAVE}, 3
        s_lshl_b32 s35, s35, 11
        v_add_u32 v{VB2[0]}, s35, v250
        v_xor_b32 v{VB2[1]}, 64, v{VB2[0]}
        ''')

    def pulls():
        n = 0
        for t in range(NPULL):
            if t == 8:
                a(f'v_add_u32 v{VB2[0]}, 0x10000, v{VB2[0]}\nv_add_u32 v{VB2[1]}, 0x10000, v{VB2[1]}')
            for TT in range(2):
                for h in range(2):
                    a(f'ds_read_b64_tr_b16 {vr(PB + 8 * t + 4 * TT + 2 * h, 2)}, v{VB2[TT]} offset:{(t & 7) * 8192 + 1024 * h}')
                    n += 1
                    if n >= 8 and n % 4 == 0:
                        a('s_waitcnt lgkmcnt(8)')
        a('s_waitcnt lgkmcnt(0)')

    def reload_setup():
        a(f'''
        v_lshrrev_b32 v250, 3, {vLANE}
        v_and_b32 v251, 7, {vLANE}
        v_bfe_u32 v252, {vLANE}, 4, 1
        v_lshlrev_b32 v252, 2, v252
        v_xor_b32 v251, v251, v252
        v_lshlrev_b32 v251, 4, v251
        s_and_b32 s35, {sWAVE}, 3
        s_lshl_b32 s34, s35, 4
        v_add_u32 v250, s34, v250
        v_lshl_add_u32 v{VBR}, v250, 10, v251
        v_add_u32 v{VBR + 1}, 7168, v{VBR}
        s_lshl_b32 s65, s35, 11
        s_lshl_b32 s66, {sC2}, 7
        ''')

    def bround_ops(t, lds):
        srdn, row = (SW2, t) if t < 22 else (SWO, t - 22)
        return [f's_add_u32 m0, s65, {lds}\ns_add_u32 s64, s66, {row * 65536}\nbuffer_load_dwordx4 v{VBR}, {srdn}, s64 offen lds',
                f'buffer_load_dwordx4 v{VBR + 1}, {srdn}, s64 offen offset:1024 lds']

    def reload():
        WR = opt('WR', 8)
        n = 0
        for t in range(NPRE, 30):
            for op in bround_ops(t, (t - NPRE) * 8192):
                if n >= WR:
                    a(f's_waitcnt vmcnt({WR - 1})')
                a(op)
                n += 1

    a(f'''
    s_cmp_ge_u32 s2, 256
    s_cbranch_scc1 L_end
    {'s_memrealtime s[92:93]' if opt('fixT', 0) else ''}
    s_load_dwordx16 s[36:51], s[0:1], 0
    s_load_dwordx4 s[52:55], s[0:1], 64
    v_lshrrev_b32 v1, 6, v0
    v_and_b32 {vLANE}, 63, v0
    s_and_b32 s64, s2, 7
    v_readfirstlane_b32 {sWAVE}, v1
    s_lshr_b32 s65, s2, 3
    s_and_b32 s66, s65, 3
    s_lshr_b32 {sR}, s64, 1
    s_lshl_b32 {sR}, {sR}, 2
    s_add_u32 {sR}, {sR}, s66
    s_lshl_b32 {sR2}, s64, 2
    s_add_u32 {sR2}, {sR2}, s66
    ''')
    if opt('map', 1) == 0:
        a(f'''
        s_bfe_u32 {sTYPE}, s65, 0x10002
        s_and_b32 {sC}, s64, 1
        s_lshl_b32 {sC}, {sC}, 2
        s_lshr_b32 s67, s65, 3
        s_add_u32 {sC}, {sC}, s67
        s_lshr_b32 {sC2}, s65, 2
        ''')
    else:
        a(f'''
        s_and_b32 {sTYPE}, s64, 1
        s_lshr_b32 {sC}, s65, 2
        s_xor_b32 {sC2}, {sC}, 4
        ''')
    a(f's_lshl_b32 s66, s66, 2\ns_lshr_b32 {sKO}, {opt("KO", 0x1010)}, s66\ns_and_b32 {sKO}, {sKO}, 7')
    if profile:
        for i in range(16):
            a(f's_mov_b32 s{80 + i}, 0')
        a('s_memrealtime s[34:35]\ns_waitcnt lgkmcnt(0)\ns_mov_b32 s95, s34')
    a(f'''
    s_cmp_lt_u32 {sWAVE}, 4
    s_cbranch_scc1 L_compute
    ''')

    VX = [200, 201, 202, 203]
    VW = [204, 205]
    VGATE = 180
    VGA = 188
    a(f'''
    s_sub_u32 s68, {sWAVE}, 4
    s_cmp_eq_u32 {sTYPE}, 1
    s_movk_i32 s69, 3072
    s_cmov_b32 s69, 2752
    v_lshrrev_b32 v1, 3, {vLANE}
    v_and_b32 v2, 7, {vLANE}
    v_lshrrev_b32 v3, 4, {vLANE}
    v_xor_b32 v4, v2, v3
    v_lshlrev_b32 v5, 10, v1
    v_lshl_add_u32 v{VX[0]}, v4, 4, v5
    v_xor_b32 v6, 64, v{VX[0]}
    v_add_u32 v{VX[1]}, 7168, v6
    v_add_u32 v{VX[2]}, 14336, v{VX[0]}
    v_add_u32 v{VX[3]}, 21504, v6
    v_and_b32 v3, 1, v3
    v_lshlrev_b32 v3, 2, v3
    v_xor_b32 v4, v2, v3
    v_lshlrev_b32 v4, 4, v4
    s_lshl_b32 s64, s68, 4
    v_add_u32 v1, s64, v1
    v_mul_u32_u24 v6, s69, v1
    v_add_u32 v{VW[0]}, v6, v4
    s_lshl_b32 s64, s69, 3
    s_sub_u32 s64, s64, 1024
    v_add_u32 v{VW[1]}, s64, v{VW[0]}
    s_lshl_b32 s70, {sR}, 17
    s_lshl_b32 s64, s68, 15
    s_add_u32 s70, s70, s64
    s_lshl_b32 s74, s69, 6
    s_lshl_b32 s75, s68, 12
    s_lshl_b32 s76, s68, 11
    s_add_u32 s76, s76, 16384
    s_add_u32 s77, s76, 8192
    s_add_u32 s78, s76, 16384
    s_lshl_b32 s79, {sKO}, 7
    s_mul_i32 s67, {sKO}, s74
    s_lshl_b32 s66, s74, 3
    s_mov_b32 s33, 0
    s_mov_b32 s32, -1
    s_cmp_eq_u32 {sTYPE}, 1
    s_cbranch_scc1 L_h_ffn
    s_lshl_b32 s71, {sC}, 7
    s_add_u32 s72, s71, 1024
    s_add_u32 s73, s71, 2048
    s_branch L_h_go
    L_h_ffn:
    s_mul_i32 s71, {sC}, 384
    s_add_u32 s72, s71, 128
    s_add_u32 s73, s71, 256
    s_cmp_lg_u32 {sC}, 7
    s_cbranch_scc1 L_h_go
    s_mov_b32 s32, 0
    s_mov_b32 s77, s78
    s_cmp_eq_u32 s68, 0
    s_cselect_b32 s33, 1, 0
    L_h_go:
    s_waitcnt lgkmcnt(0)
    s_load_dword {sTAG}, s[54:55], {WS_EPOCH}
    ''')
    srd(SX, 36, 2097152)
    a(f'''
    s_cmp_eq_u32 {sTYPE}, 1
    s_cselect_b64 s[8:9], s[44:45], s[38:39]
    s_mov_b32 s10, 1572864
    s_cmov_b32 s10, 1409024
    s_mov_b32 s11, 0x20000
    s_mov_b64 s[96:97], s[8:9]
    s_and_b32 s98, s10, s32
    s_mov_b32 s99, 0x20000
    s_cmp_eq_u32 s33, 0
    s_cbranch_scc1 L_h_nogate0
    ''')
    srd(SMISC, 48, 1024)
    a(f'v_lshlrev_b32 v1, 1, {vLANE}')
    for j in range(8):
        a(f's_add_u32 s64, s79, {128 * j}\ns_and_b32 s64, s64, 1023')
        a(f'buffer_load_ushort v{VGATE + j}, v1, {SMISC}, s64 offen')
    a(f'''
    v_lshlrev_b32 v2, 5, {vLANE}
    v_and_b32 v2, 64, v2
    v_lshl_add_u32 v{VGA}, {vLANE}, 7, v2
    v_add_u32 v{VGA}, {16384 + 8192}, v{VGA}
    v_xor_b32 v{VGA + 1}, 64, v{VGA}
    v_add_u32 v{VGA + 2}, {2 * SLOT}, v{VGA}
    v_add_u32 v{VGA + 3}, {2 * SLOT}, v{VGA + 1}
    L_h_nogate0:
    ''')

    W1 = opt('W1', 10)
    ops = []
    for st in range(8):
        sl = (st & 3) * SLOT
        for j in range(4):
            pre = f's_add_u32 m0, s75, {sl}\ns_add_u32 s64, s70, s79\n' if j == 0 else ''
            post = '\ns_add_u32 s79, s79, 128\ns_and_b32 s79, s79, 1023' if j == 3 else ''
            ops.append(pre + f'buffer_load_dwordx4 v{VX[j]}, {SX}, s64 offen offset:{1024 * j} lds' + post)
        for b in range(3):
            sw = SW if b == 0 else SWB
            post = '\ns_add_u32 s67, s67, s74\ns_cmp_eq_u32 s67, s66\ns_cselect_b32 s67, 0, s67' if b == 2 else ''
            ops.append(f's_add_u32 m0, s{76 + b}, {sl}\ns_add_u32 s64, s{71 + b}, s67\nbuffer_load_dwordx4 v{VW[0]}, {sw}, s64 offen lds')
            ops.append(f'buffer_load_dwordx4 v{VW[1]}, {sw}, s64 offen offset:1024 lds' + post)
    for t in range(NPRE):
        ops += bround_ops(t, t * 8192)

    def gate_write(st):
        lab = a.label('L_h_nogate')
        a(f's_cmp_eq_u32 s33, 0\ns_cbranch_scc1 {lab}')
        sts = [st] if st >= 4 else [0, 1, 2, 3]
        for u in sts:
            o = (u & 1) * SLOT
            k = ((u >> 1) & 1) * 2
            a(f'ds_write_b16 v{VGA + k}, v{VGATE + u} offset:{o}')
            a(f'ds_write_b16 v{VGA + k + 1}, v{VGATE + u} offset:{o}')
        a(f'{lab}:')

    nbar = 0
    WB = opt('WB', 0)
    NB8 = opt('NB8', 89 + W1)
    NA = opt('NA', NB8 + 6)
    for n, op in enumerate(ops):
        need = (n // 10 - 3) if n < 80 else 5 + (n - 80) // 10
        assert need < nbar, (n, need, nbar)
        if n == 80:
            reload_setup()
        if n == NA:
            a(f's_cmp_eq_u32 {sTYPE}, 1\ns_cbranch_scc1 L_h_noA\ns_barrier\nL_h_noA:')
        if WB and n > NB8:
            a(f's_waitcnt vmcnt({WB - 1})')
        if ('noload' not in opts or n >= 80):
            a(op)
        if n == 9:
            rest_srds()
            if 'cpf' in opts:
                a(f'''
                s_cmp_lg_u32 s68, 3
                s_cbranch_scc1 L_h_nocpf
                s_getpc_b64 s[34:35]
                v_lshlrev_b32 v1, 7, {vLANE}
                global_load_dword v2, v1, s[34:35]
                v_add_u32 v1, 0x2000, v1
                global_load_dword v3, v1, s[34:35]
                L_h_nocpf:
                ''')
        if nbar < 8 and n == 10 * (nbar + 1) - 1 + W1:
            if nbar == 0:
                a(f's_waitcnt vmcnt({W1}) lgkmcnt(0)')
                gate_write(0)
                make_tag()
            a(f's_waitcnt vmcnt({W1}) lgkmcnt(0)')
            if diag or nbar == 0:
                stamp(nbar)
            a('s_barrier')
            if 1 <= nbar <= 4:
                gate_write(nbar + 3)
            nbar += 1
        elif nbar == 8 and n == NB8:
            a('s_barrier')
            if diag:
                stamp(8)
            nbar += 1
    assert nbar == 9 and NA > NB8
    b2_addr()
    if diag:
        a('s_waitcnt vmcnt(0)')
        stamp(9)
        stamp_on[0] = False
    stamp(1)
    a(f's_cmp_eq_u32 {sTYPE}, 0\ns_cbranch_scc1 L_h_attn')
    a('s_waitcnt vmcnt(0)\ns_barrier')
    pulls()
    a('s_barrier')
    stamp(2)
    reload()
    a('s_branch L_phase2')
    IDN, PQ, PP, KVF = 112, 96, 32, 16
    a(f'''
    L_h_attn:
    v_and_b32 v1, 31, {vLANE}
    v_lshrrev_b32 v2, 5, {vLANE}
    v_lshlrev_b32 v3, 2, v2
    v_sub_u32 v3, v1, v3
    v_subrev_u32 v4, 4, v3
    v_cmp_gt_u32 vcc, 8, v3
    s_nop 1
    v_cndmask_b32 v4, v4, v3, vcc
    v_and_b32 v5, 4, v3
    v_cmp_eq_u32 vcc, 0, v5
    v_cmp_gt_u32 s[64:65], 12, v3
    s_and_b64 vcc, vcc, s[64:65]
    v_mov_b32 v5, 64
    s_nop 0
    v_cndmask_b32 v4, v5, v4, vcc
    v_and_b32 v5, 1, v4
    v_lshlrev_b32 v5, 4, v5
    v_mov_b32 v6, 0x3f80
    v_lshlrev_b32 v5, v5, v6
    v_lshrrev_b32 v4, 1, v4
    ''')
    for p in range(4):
        a(f'v_cmp_eq_u32 vcc, {p}, v4\ns_nop 1\nv_cndmask_b32 v{IDN + p}, 0, v5, vcc')
    a(f'''
    v_min_u32 v3, 16, v1
    v_lshl_add_u32 v3, v2, 5, v3
    v_lshlrev_b32 v116, 4, v3
    v_min_u32 v117, 15, {vLANE}
    v_lshlrev_b32 v117, 2, v117
    v_lshlrev_b32 v118, 4, {vLANE}
    s_lshr_b32 s64, s68, 1
    s_lshl_b32 s64, s64, 12
    s_and_b32 s65, s68, 1
    s_lshl_b32 s65, s65, 10
    s_add_u32 s64, s64, s65
    s_add_u32 s64, s64, {MISC}
    v_add_u32 v118, s64, v118
    s_add_u32 s64, {sC}, 22
    ''')
    afrag_voff('v119', 's64', 'v3', 'v4')
    a(f'''
    s_lshl_b32 s66, {sC}, 2
    s_add_u32 s66, s66, s68
    s_lshl_b32 s67, s66, 8
    s_add_u32 s67, s67, {WS_FP}
    s_lshl_b32 s66, s66, 14
    s_add_u32 s66, s66, {WS_PART}
    s_waitcnt vmcnt(0)
    s_barrier
    ''')
    for tl in range(4):
        a(f'ds_read_b128 {vr(PQ + 4 * tl)}, v118 offset:{(tl >> 1) * 8192 + (tl & 1) * 2048}')
    pulls()
    a('s_barrier')
    stamp(2)
    poll('v117', 's67')
    stamp(3)
    vm = Q(a, 'vmcnt', 63)
    for r in range(16):
        a(f'buffer_load_dwordx4 {vr(PP + 4 * r)}, v116, {SWS}, s66 offen offset:{(r & 3) * 1024} sc1')
        vm.push(r)
        if r & 3 == 3 and r < 15:
            a('s_add_u32 s66, s66, 4096')
    a(f'''
    s_lshl_b32 s64, {sR}, 4
    s_add_u32 s64, s64, s68
    s_mul_i32 s64, s64, {AREG}
    s_add_u32 s64, s64, {WS_A}
    s_lshl_b32 s65, {sR}, 2
    s_add_u32 s65, s65, s68
    s_lshl_b32 s65, s65, 8
    s_lshl_b32 s67, {sC}, 2
    s_add_u32 s65, s65, s67
    s_add_u32 s65, s65, {WS_FO}
    s_mov_b32 s67, 0x358637bd
    ''')
    for r in range(16):
        vm.wait(r)
        a(f'v_mfma_f32_32x32x16_bf16 v[0:15], {vr(IDN)}, {vr(PP + 4 * r)}, {"0" if r == 0 else "v[0:15]"}')
    a('s_nop 11')
    for p in range(4):
        a(f'v_cvt_pk_bf16_f32 v{KVF + p}, v{2 * p}, v{2 * p + 1}')
    a('s_nop 1')
    for tl in range(4):
        a(f'v_mfma_f32_32x32x16_bf16 {vr(32 + 16 * tl, 16)}, {vr(KVF)}, {vr(PQ + 4 * tl)}, 0')
    a('s_nop 8')
    for tl in range(4):
        d = 32 + 16 * tl
        a(f'v_add_f32 v{d + 8}, s67, v{d + 8}\nv_rcp_f32 v{d + 8}, v{d + 8}\ns_nop 0')
        for p in range(4):
            a(f'v_pk_mul_f32 {vr(d + 2 * p, 2)}, {vr(d + 2 * p, 2)}, {vr(d + 8, 2)} op_sel_hi:[1,0]')
        for p in range(4):
            a(f'v_cvt_pk_bf16_f32 v{d + 12 + p}, v{d + 2 * p}, v{d + 2 * p + 1}')
        a(f'buffer_store_dwordx4 {vr(d + 12)}, v119, {SWS}, s64 offen sc1')
        a(f's_add_u32 s64, s64, {4 * AREG}')
    a('s_waitcnt vmcnt(0)')
    flag('s65')
    stamp(4)
    a('s_branch L_phase2')

    FX = [[96, 100], [104, 108]]
    FW = [[112, 116, 120], [124, 128, 132]]
    VXA = [[136, 137, 138, 139], [140, 141, 142, 143]]
    VWA = [144, 145]
    a(f'''
    L_compute:
    s_lshr_b32 s68, {sWAVE}, 1
    s_and_b32 s69, {sWAVE}, 1
    v_and_b32 v1, 31, {vLANE}
    v_lshrrev_b32 v2, 5, {vLANE}
    v_bfe_u32 v3, {vLANE}, 1, 3
    v_xor_b32 v3, v2, v3
    s_lshl_b32 s64, s68, 6
    v_add_u32 v1, s64, v1
    v_lshlrev_b32 v1, 7, v1
    v_lshl_add_u32 v{VXA[0][0]}, v3, 4, v1
    ''')
    for ks in range(1, 4):
        a(f'v_xor_b32 v{VXA[0][ks]}, {32 * ks}, v{VXA[0][0]}')
    for ks in range(4):
        a(f'v_add_u32 v{VXA[1][ks]}, {2 * SLOT}, v{VXA[0][ks]}')
    a(f'''
    v_bfe_u32 v3, {vLANE}, 2, 2
    v_lshl_add_u32 v4, v2, 3, v3
    v_lshlrev_b32 v4, 7, v4
    v_lshrrev_b32 v3, 1, v3
    v_xor_b32 v3, s69, v3
    v_lshl_add_u32 v4, v3, 6, v4
    v_bfe_u32 v3, {vLANE}, 4, 1
    v_lshl_add_u32 v4, v3, 5, v4
    v_and_b32 v3, 3, {vLANE}
    v_lshl_add_u32 v4, v3, 3, v4
    v_add_u32 v{VWA[0]}, 16384, v4
    v_add_u32 v{VWA[1]}, {16384 + 2 * SLOT}, v4
    s_waitcnt lgkmcnt(0)
    s_load_dword {sTAG}, s[54:55], {WS_EPOCH}
    ''')
    rest_srds()
    b2_addr()
    VE0, VE1, VE2 = 233, 234, 235
    reload_setup()
    a(f's_cmp_eq_u32 {sTYPE}, 1\ns_cbranch_scc1 L_c_setf')
    a(f'''
    s_mov_b32 s70, 0x3fb8aa3b
    s_mov_b32 s72, 0x358637bd
    s_mov_b32 s74, 0x0000ffff
    s_mov_b32 s75, 0x0000ffff
    s_lshl_b32 s64, s68, 4
    v_xor_b32 v{VE0}, s64, {vLANE}
    v_lshlrev_b32 v{VE0}, 4, v{VE0}
    v_lshlrev_b32 v{VE1}, 4, {vLANE}
    s_lshl_b32 s64, {sWAVE}, 12
    s_add_u32 s64, s64, {MISC}
    v_add_u32 v{VE1}, s64, v{VE1}
    v_xor_b32 v{VE2}, 8192, v{VE1}
    s_lshl_b32 s76, {sC}, 2
    s_lshl_b32 s77, s69, 1
    s_add_u32 s76, s76, s77
    s_add_u32 s76, s76, s68
    s_lshl_b32 s77, s76, 8
    s_lshl_b32 s78, {sR}, 2
    s_add_u32 s77, s77, s78
    s_add_u32 s77, s77, {WS_FP}
    s_lshl_b32 s76, s76, 4
    s_add_u32 s76, s76, {sR}
    s_lshl_b32 s76, s76, 10
    s_add_u32 s76, s76, {WS_PART}
    s_cmp_eq_u32 s68, 0
    s_mov_b32 s78, 0xffff0001
    s_cmov_b32 s78, 0x1ffff
    s_mov_b32 s79, s78
    s_branch L_c_set1
    L_c_setf:
    s_mov_b32 s70, 0xbfb8aa3b
    s_lshl_b32 s64, {sR}, 2
    s_lshl_b32 s65, s68, 1
    s_add_u32 s64, s64, s65
    s_lshl_b32 s66, s64, 8
    s_lshl_b32 s64, s64, 2
    s_lshl_b32 s65, s69, 1
    s_add_u32 s64, s64, s65
    s_mul_i32 s64, s64, {AREG}
    s_add_u32 s72, s64, {WS_A}
    s_add_u32 s73, s72, {AREG}
    s_add_u32 s74, s72, {4 * AREG}
    s_add_u32 s75, s73, {4 * AREG}
    s_lshl_b32 s76, s69, 14
    s_add_u32 s76, s76, s66
    s_add_u32 s76, s76, {WS_G}
    s_lshl_b32 s77, {sR}, 1
    s_add_u32 s77, s77, s68
    s_lshl_b32 s77, s77, 1
    s_add_u32 s77, s77, s69
    s_lshl_b32 s77, s77, 8
    s_lshl_b32 s66, {sC}, 2
    s_add_u32 s77, s77, s66
    s_add_u32 s77, s77, {WS_FH}
    s_mul_i32 s64, {sC}, 3
    ''')
    for b in range(3):
        afrag_voff(f'v{VE0 + b}', 's64', 'v1', 'v2')
        a('s_add_u32 s64, s64, 1')
    a('L_c_set1:')
    for i in range(96):
        a(f'v_mov_b32 v{i}, 0')
    a('s_waitcnt lgkmcnt(0)')
    make_tag()
    stamp(0)
    a('s_barrier')

    def reads(stage, ks, buf):
        st, par = (stage >> 1) & 1, stage & 1
        xo = par * SLOT
        wo = par * SLOT + ks * 2048
        r = []
        r.append((f'ds_read_b128 {vr(FX[buf][0])}, v{VXA[st][ks]} offset:{xo}', ('x', buf, 0)))
        r.append((f'ds_read_b64_tr_b16 {vr(FW[buf][0], 2)}, v{VWA[st]} offset:{wo}', ('wa', buf, 0)))
        r.append((f'ds_read_b64_tr_b16 {vr(FW[buf][0] + 2, 2)}, v{VWA[st]} offset:{wo + 512}', ('w', buf, 0)))
        r.append((f'ds_read_b128 {vr(FX[buf][1])}, v{VXA[st][ks]} offset:{xo + 4096}', ('x', buf, 1)))
        for b in (1, 2):
            r.append((f'ds_read_b64_tr_b16 {vr(FW[buf][b], 2)}, v{VWA[st]} offset:{wo + b * 8192}', ('wa', buf, b)))
            r.append((f'ds_read_b64_tr_b16 {vr(FW[buf][b] + 2, 2)}, v{VWA[st]} offset:{wo + b * 8192 + 512}', ('w', buf, b)))
        return r

    def mainloop(attn, lab):
        if 'nomfma' in opts:
            a('s_barrier\n' * 8)
            return
        lg = Q(a, 'lgkmcnt', 15)
        for ins, tag in reads(0, 0, 0):
            a(ins); lg.push(tag)
        a(f's_mov_b32 s64, 2\n{lab}:')
        for stage in range(4):
            for ks in range(4):
                buf = ks & 1
                nxt = reads(stage, ks + 1, buf ^ 1) if ks < 3 else reads((stage + 1) & 3, 0, buf ^ 1)
                order = [(0, 0), (0, 1), (1, 0), (1, 1), (2, 0), (2, 1)]
                start = 0 if ks < 3 else 2
                for i, (b, m) in enumerate(order):
                    lg.wait(('x', buf, m), ('w', buf, b))
                    acc = vr(16 * (2 * b + m), 16)
                    x, w = vr(FX[buf][m]), vr(FW[buf][b])
                    if attn and b > 0:
                        a(f'v_mfma_f32_32x32x16_bf16 {acc}, {x}, {w}, {acc}')
                    else:
                        a(f'v_mfma_f32_32x32x16_bf16 {acc}, {w}, {x}, {acc}')
                    if ks == 3 and i == 1:
                        lg.drain()
                        a('s_barrier')
                    if start <= i + (1 if ks == 3 else 0) and nxt:
                        n = 2 if ks < 3 else (3 if i < 3 else 2)
                        for ins, tag in nxt[:n]:
                            a(ins); lg.push(tag)
                        nxt = nxt[n:]
                assert not nxt
        a(f's_sub_u32 s64, s64, 1\ns_cmp_lg_u32 s64, 0\ns_cbranch_scc1 {lab}')
        a('s_waitcnt lgkmcnt(0)\ns_nop 7')

    a(f's_cmp_eq_u32 {sTYPE}, 1\ns_cbranch_scc1 L_c_ffn')
    mainloop(True, 'L_ml_attn')
    stamp(1)
    PK, VF, ONE, KV, ZZ = 96, 112, 128, 160, 176
    for p in range(4):
        a(f'v_mov_b32 v{ONE + p}, 0x3f803f80')
    assert (MISC >> 13) & 1 == 0

    def phi8(src, dst):
        for p in range(4):
            a(f'v_pk_mul_f32 {vr(T + 2 * p, 2)}, {vr(src + 2 * p, 2)}, s[70:71] op_sel_hi:[1,0]')
        for i in range(8):
            a(f'v_exp_f32 v{T + i}, v{T + i} clamp')
        for i in range(8):
            a(f'v_max_f32 v{src + i}, s72, v{src + i}')
        for p in range(4):
            a(f'v_pk_add_f32 {vr(T + 2 * p, 2)}, {vr(T + 2 * p, 2)}, {vr(src + 2 * p, 2)}')
        for p in range(4):
            a(f'v_cvt_pk_bf16_f32 v{dst + p}, v{T + 2 * p}, v{T + 2 * p + 1}')

    for g in range(4):
        phi8(32 + 8 * g, PK + 4 * g)
        for p in range(4):
            a(f'v_cvt_pk_bf16_f32 v{VF + 4 * g + p}, v{64 + 8 * g + 2 * p}, v{64 + 8 * g + 2 * p + 1}')
        a('s_nop 1')
        a(f'v_mfma_f32_32x32x16_bf16 {vr(KV, 16)}, {vr(PK + 4 * g)}, {vr(VF + 4 * g)}, {"0" if g == 0 else vr(KV, 16)}')
        a(f'v_mfma_f32_32x32x16_bf16 {vr(ZZ, 16)}, {vr(PK + 4 * g)}, {vr(ONE)}, {"0" if g == 0 else vr(ZZ, 16)}')
    PQW = 192
    phi8(0, PQW)
    for j in range(8):
        a(f'v_cndmask_b32 v{KV + j}, v{ZZ + j}, v{KV + j}, s[74:75]')
    for j in range(8, 16):
        a(f'v_cndmask_b32 v{KV + j}, v{KV + j}, v{ZZ + j}, s[74:75]')
    a(f'''
    s_cmp_eq_u32 s68, 0
    s_cbranch_scc1 L_a_wr0
    ds_write_b128 v{VE2}, {vr(KV)}
    ds_write_b128 v{VE2}, {vr(KV + 4)} offset:1024
    ''')
    for j in range(8):
        a(f'v_mov_b32 v{KV + j}, v{KV + 8 + j}')
    a(f'''
    s_branch L_a_wr1
    L_a_wr0:
    ds_write_b128 v{VE2}, {vr(KV + 8)}
    ds_write_b128 v{VE2}, {vr(KV + 12)} offset:1024
    L_a_wr1:
    s_waitcnt lgkmcnt(0)
    s_barrier
    ds_read_b128 {vr(ZZ)}, v{VE1}
    ds_read_b128 {vr(ZZ + 4)}, v{VE1} offset:1024
    s_waitcnt lgkmcnt(0)
    ''')
    for p in range(4):
        a(f'v_pk_add_f32 {vr(KV + 2 * p, 2)}, {vr(KV + 2 * p, 2)}, {vr(ZZ + 2 * p, 2)}')
    for p in range(4):
        a(f'v_cvt_pk_bf16_f32 v{KV + 8 + p}, v{KV + 2 * p}, v{KV + 2 * p + 1}')
    a(f's_mov_b64 exec, s[78:79]\nbuffer_store_dwordx4 {vr(KV + 8)}, v{VE0}, {SWS}, s76 offen sc1\ns_mov_b64 exec, -1')
    stamp(4)
    for g in range(1, 4):
        phi8(8 * g, PQW + 4 * g)
    for g in range(4):
        a(f'ds_write_b128 v{VE1}, {vr(PQW + 4 * g)} offset:{1024 * g}')
    stamp(3)
    a('s_waitcnt vmcnt(0)')
    flag('s77')
    stamp(2)
    a('s_waitcnt lgkmcnt(0)\ns_barrier')
    pulls()
    a('s_barrier')
    reload()
    a('s_branch L_phase2')

    a('L_c_ffn:')
    mainloop(False, 'L_ml_ffn')
    stamp(1)

    def silu8(src, dst):
        for p in range(4):
            a(f'v_pk_mul_f32 {vr(T + 2 * p, 2)}, {vr(src + 2 * p, 2)}, s[70:71] op_sel_hi:[1,0]')
        for i in range(8):
            a(f'v_exp_f32 v{T + i}, v{T + i}')
        for p in range(4):
            a(f'v_pk_add_f32 {vr(T + 2 * p, 2)}, {vr(T + 2 * p, 2)}, 1.0 op_sel_hi:[1,0]')
        for i in range(8):
            a(f'v_rcp_f32 v{T + i}, v{T + i}')
        for p in range(4):
            a(f'v_pk_mul_f32 {vr(T + 2 * p, 2)}, {vr(T + 2 * p, 2)}, {vr(src + 2 * p, 2)}')
        for p in range(4):
            a(f'v_cvt_pk_bf16_f32 v{dst + p}, v{T + 2 * p}, v{T + 2 * p + 1}')

    n = 0
    for b in range(3):
        for m in range(2):
            for f in range(2):
                dst = 96 + 4 * (n % 6); n += 1
                silu8(16 * (2 * b + m) + 8 * f, dst)
                a(f'buffer_store_dwordx4 {vr(dst)}, v{VE0 + b}, {SWS}, s{72 + 2 * m + f} offen sc1')
        if b == 0:
            a(f's_cmp_eq_u32 {sC}, 7\ns_cbranch_scc1 L_f_gate')
    a('s_branch L_f_flag')
    a(f'''
    L_f_gate:
    v_mul_f32 v{T}, s70, v32
    v_mul_f32 v{T + 1}, s70, v48
    v_exp_f32 v{T}, v{T}
    v_exp_f32 v{T + 1}, v{T + 1}
    v_lshlrev_b32 v{T + 2}, 2, {vLANE}
    v_add_f32 v{T}, 1.0, v{T}
    v_add_f32 v{T + 1}, 1.0, v{T + 1}
    v_rcp_f32 v{T}, v{T}
    v_rcp_f32 v{T + 1}, v{T + 1}
    s_mov_b32 exec_hi, 0
    buffer_store_dword v{T}, v{T + 2}, {SWS}, s76 offen sc1
    buffer_store_dword v{T + 1}, v{T + 2}, {SWS}, s76 offen offset:256 sc1
    s_mov_b64 exec, -1
    L_f_flag:
    ''')
    stamp(3)
    if 'flaglate' not in opts:
        a('s_waitcnt vmcnt(0)')
        flag('s77')
        stamp(2)
    a('s_barrier')
    pulls()
    a('s_barrier')
    if 'flaglate' in opts:
        a('s_waitcnt vmcnt(0)')
        flag('s77')
        stamp(2)

    a(f'''
    L_phase2:
    s_and_b32 s68, {sWAVE}, 3
    s_lshr_b32 s69, {sWAVE}, 2
    v_min_u32 v{VFL}, 7, {vLANE}
    v_lshlrev_b32 v{VFL}, 2, v{VFL}
    v_and_b32 v5, 31, {vLANE}
    v_lshlrev_b32 v5, 2, v5
    s_lshl_b32 s64, {sR2}, 1
    s_add_u32 s64, s64, s69
    s_lshl_b32 s65, s64, 8
    s_lshl_b32 s64, s64, 2
    s_add_u32 s64, s64, s68
    s_mul_i32 s70, s64, {AREG}
    s_add_u32 s70, s70, {WS_A}
    s_lshr_b32 s66, s68, 1
    s_lshl_b32 s67, s66, 14
    s_add_u32 s65, s65, s67
    s_add_u32 s65, s65, {WS_G}
    s_lshl_b32 s64, {sR2}, 1
    s_add_u32 s64, s64, s66
    s_lshl_b32 s64, s64, 8
    s_add_u32 s64, s64, {WS_FH}
    s_lshr_b32 s71, {sR2}, 1
    s_lshl_b32 s71, s71, 2
    s_add_u32 s71, s71, s68
    s_lshl_b32 s71, s71, 8
    s_add_u32 s71, s71, {WS_FO}
    s_lshl_b32 s73, {sC2}, 7
    ''')
    for j in range(7):
        afrag_voff(f'v{VA + j}', j, 'v1', 'v2')
    stamp(5)
    poll(f'v{VFL}', 's64')
    stamp(6)
    vm = Q(a, 'vmcnt', 63)
    lg = Q(a, 'lgkmcnt', 15)
    a(f'buffer_load_dword v{VG}, v5, {SWS}, s65 offen sc1'); vm.push('g')
    W2 = opt('W2', 5)
    NQ = opt('NQ', 19)

    def aload(t):
        if t and t % 7 == 0:
            a('s_add_u32 s70, s70, 8192')
        a(f'buffer_load_dwordx4 {vr(AF + 4 * (t % NSL))}, v{VA + t % 7}, {SWS}, s70 offen sc1')
        vm.push(('A', t))

    stream = [('A', t) for t in range(22)]
    stream.insert(NQ, 'Q')
    state = dict(done=-1, q=False)

    def topup():
        while stream and len(vm.q) < W2:
            it = stream[0]
            if it != 'Q' and it[1] - state['done'] > NSL - 1:
                break
            stream.pop(0)
            if it == 'Q':
                a(f'buffer_load_dword v252, v{VFL}, {SWS}, s71 offen sc1')
                vm.push('Q')
            else:
                aload(it[1])

    def baddr(t):
        return t * 8192 if t < NPRE else (t - NPRE) * 8192

    cur_base = [0x10000]

    def breads(t):
        ad = baddr(t)
        base = ad & ~0xffff
        if base != cur_base[0]:
            dlt = base - cur_base[0]
            for TT in range(2):
                if dlt > 0:
                    a(f'v_add_u32 v{VB2[TT]}, {dlt}, v{VB2[TT]}')
                else:
                    a(f'v_subrev_u32 v{VB2[TT]}, {-dlt}, v{VB2[TT]}')
            cur_base[0] = base
        o = ad - base
        bb = BF + 8 * (t & 1)
        for TT in range(2):
            a(f'ds_read_b64_tr_b16 {vr(bb + 4 * TT, 2)}, v{VB2[TT]} offset:{o}'); lg.push(('ba', t, TT))
            a(f'ds_read_b64_tr_b16 {vr(bb + 4 * TT + 2, 2)}, v{VB2[TT]} offset:{o + 1024}'); lg.push(('b', t, TT))

    def checkq():
        if not state['q'] and 'Q' not in stream and 'Q' not in vm.q:
            state['q'] = True
            stamp(7)
            a(f'v_cmp_ne_u32 vcc, {sTAG}, v252\ns_cbranch_vccnz L_p2_spin\nL_p2_ook:')
            stamp(8)
            stream.extend([('A', u) for u in range(22, 30)])

    topup()
    for t in range(30):
        if t + 1 >= NPULL and t + 1 < 30 and t + 1 != NPRE:
            breads(t + 1)
        while ('A', t) not in vm.q:
            vm.wait(vm.q[0]); checkq(); topup()
        vm.wait(('A', t))
        checkq()
        topup()
        for TT in range(2):
            acc = vr((AH if t < 22 else AO) + 16 * TT, 16)
            if t < NPULL:
                bop = vr(PB + 8 * t + 4 * TT)
            else:
                lg.wait(('b', t, TT))
                bop = vr(BF + 8 * (t & 1) + 4 * TT)
            a(f'v_mfma_f32_32x32x16_bf16 {acc}, {bop}, {vr(AF + 4 * (t % NSL))}, {"0" if t in (0, 22) else acc}')
        state['done'] = t
        if t == NPRE - 1:
            a('s_barrier')
            breads(t + 1)
    assert not stream and state['q']
    stamp(9)
    a(f'''
    s_or_b32 s33, s2, {sWAVE}
    s_cbranch_scc1 L_fin0
    v_lshrrev_b32 v108, 3, {vLANE}
    v_and_b32 v109, 7, {vLANE}
    v_lshlrev_b32 v109, 2, v109
    v_lshl_add_u32 v108, v108, 10, v109
    s_mov_b32 s74, {WS_FH}
    s_mov_b32 s75, {WS_FH + 8192}
    buffer_load_dword v110, v108, {SWS}, s74 offen sc1
    buffer_load_dword v111, v108, {SWS}, s75 offen sc1
    L_fin0:
    v_sub_f32 v{VOMG}, 1.0, v{VG}
    v_and_b32 v100, 31, {vLANE}
    v_lshrrev_b32 v101, 5, {vLANE}
    v_and_b32 v102, 7, {vLANE}
    v_xor_b32 v101, v101, v102
    v_lshlrev_b32 v100, 8, v100
    v_lshl_add_u32 v100, v101, 4, v100
    s_lshl_b32 s64, s68, 14
    s_lshl_b32 s65, s69, 13
    s_add_u32 s64, s64, s65
    s_add_u32 s64, s64, {RED}
    v_add_u32 v100, s64, v100
    v_xor_b32 v101, 32, v100
    v_xor_b32 v102, 64, v100
    v_xor_b32 v103, 96, v100
    v_lshrrev_b32 v104, 3, {vLANE}
    v_and_b32 v105, 7, {vLANE}
    v_lshlrev_b32 v106, 1, v105
    v_xor_b32 v106, v106, v104
    v_lshlrev_b32 v107, 8, v104
    v_lshl_add_u32 v106, v106, 4, v107
    s_lshl_b32 s64, {sWAVE}, 11
    s_add_u32 s64, s64, {RED}
    v_add_u32 v106, s64, v106
    v_xor_b32 v107, 16, v106
    v_lshlrev_b32 v104, 10, v104
    v_lshl_add_u32 v104, v105, 4, v104
    s_lshl_b32 s64, {sR2}, 16
    s_lshl_b32 s65, {sWAVE}, 13
    s_add_u32 s64, s64, s65
    s_add_u32 s64, s64, s73
    ''')
    assert RED % 256 == 0
    for TT in range(2):
        for q in range(4):
            for p in range(2):
                o = 16 * TT + 4 * q + 2 * p
                a(f'v_pk_mul_f32 {vr(AO + o, 2)}, {vr(AO + o, 2)}, {vr(VG, 2)} op_sel_hi:[1,0]')
            for p in range(2):
                o = 16 * TT + 4 * q + 2 * p
                a(f'v_pk_fma_f32 {vr(AH + o, 2)}, {vr(AH + o, 2)}, {vr(VOMG, 2)}, {vr(AO + o, 2)} op_sel_hi:[1,0,1]')
            a(f'ds_write_b128 v{100 + q}, {vr(AH + 16 * TT + 4 * q)} offset:{128 * TT}')
    a('s_waitcnt lgkmcnt(0)\ns_barrier')
    for k in range(4):
        a(f'ds_read_b128 {vr(64 + 8 * k)}, v106 offset:{16384 * k}')
        a(f'ds_read_b128 {vr(68 + 8 * k)}, v107 offset:{16384 * k}')
    a('s_waitcnt lgkmcnt(4)')
    for p in range(4):
        a(f'v_pk_add_f32 {vr(64 + 2 * p, 2)}, {vr(64 + 2 * p, 2)}, {vr(72 + 2 * p, 2)}')
    a('s_waitcnt lgkmcnt(0)')
    for p in range(4):
        a(f'v_pk_add_f32 {vr(80 + 2 * p, 2)}, {vr(80 + 2 * p, 2)}, {vr(88 + 2 * p, 2)}')
    for p in range(4):
        a(f'v_pk_add_f32 {vr(64 + 2 * p, 2)}, {vr(64 + 2 * p, 2)}, {vr(80 + 2 * p, 2)}')
    for p in range(4):
        a(f'v_cvt_pk_bf16_f32 v{96 + p}, v{64 + 2 * p}, v{64 + 2 * p + 1}')
    a(f'buffer_store_dwordx4 v[96:99], v104, {SOUT}, s64 offen')
    stamp(10)
    a(f'''
    s_cmp_lg_u32 s33, 0
    s_cbranch_scc1 L_fin1
    s_waitcnt vmcnt(1)
    v_xor_b32 v110, {sTAG}, v110
    v_xor_b32 v111, {sTAG}, v111
    v_or_b32 v110, v110, v111
    v_cmp_ne_u32 vcc, 0, v110
    s_cbranch_vccz L_fin2
    ''')
    poll('v108', 's74')
    poll('v108', 's75')
    a(f'L_fin2:\ns_mov_b32 s64, {WS_EPOCH}')
    flag('s64')
    a('L_fin1:')
    if opt('fixT', 0):
        a(f'''
        L_fix:
        s_sleep 2
        s_memrealtime s[90:91]
        s_waitcnt lgkmcnt(0)
        s_sub_u32 s90, s90, s92
        s_cmp_lt_u32 s90, {opt('fixT', 0)}
        s_cbranch_scc1 L_fix
        ''')
    if profile:
        a('s_waitcnt vmcnt(0)')
        stamp(11)
        a(f'''
        s_lshl_b32 s64, s2, 3
        s_add_u32 s64, s64, {sWAVE}
        s_lshl_b32 s64, s64, 6
        s_add_u32 s64, s64, {WS_PROF}
        v_mov_b32 v1, 0
        s_mov_b64 exec, 1
        ''')
        if 'dbgtime' in opts:
            srd(SMISC, 52, 256)
            a('s_not_b32 s94, s95')
            a(f's_bitcmp1_b32 {sWAVE}, 0\ns_cbranch_scc1 L_end\ns_bitcmp1_b32 {sWAVE}, 1\ns_cbranch_scc1 L_end')
            for i in list(range(12)) + [14, 15]:
                a(f'v_mov_b32 v2, s{80 + i}\nbuffer_atomic_umax v2, v1, {SMISC}, 0 offen offset:{4 * i}')
        else:
            for i in range(16):
                a(f'v_mov_b32 v2, s{80 + i}\nbuffer_store_dword v2, v1, {SWS}, s64 offen offset:{4 * i}')
    a('L_end:\ns_endpgm\nL_p2_spin:')
    poll(f'v{VFL}', 's71')
    a('s_branch L_p2_ook')

    body = a.text()
    errs = hazard.check(body)
    for e in errs:
        print('HAZARD', e, file=sys.stderr)
    head = open('cdna_kernels/' + NAME + '.s.ref').read().split('; Override')[0]
    head += '; @launch grid=(256,1,1) block=(512,1,1) lds=163840\n.amdgcn_target "amdgcn-amd-amdhsa--gfx950"\n'
    return head + kernel_head(K) + body + kernel_desc(K, 256, 256, 100), errs


if __name__ == '__main__':
    prof = 'prof' in sys.argv[1:]
    out = sys.argv[1] if len(sys.argv) > 1 else 'k.s'
    txt, errs = gen(prof, sys.argv[2:])
    open(out, 'w').write(txt)
    print(out, len(txt), 'bytes', len(errs), 'hazards')
```
